```python
import torch

def _softmax(x, axis=-1):
    return torch.softmax(x, dim=axis)
def _gelu(x):
    return torch.nn.functional.gelu(x, approximate="tanh")
def _silu(x):
    return torch.nn.functional.silu(x)
def _sigmoid(x):
    return torch.sigmoid(x)
def _layernorm(x, axis=-1, eps=1e-5):
    m = x.mean(dim=axis, keepdim=True)
    v = x.var(dim=axis, keepdim=True, unbiased=False)
    return (x - m) / torch.sqrt(v + eps)
def _scatter_add(tgt, idx, src, axis=0):
    return tgt.clone().index_add_(axis, idx, src)
def _segment_sum(src, seg, n):
    out = torch.zeros((n,) + src.shape[1:], dtype=src.dtype)
    return out.index_add_(0, seg, src)
def _pad(x, pw):
    flat = tuple(v for pair in reversed(pw) for v in pair)
    return torch.nn.functional.pad(x, flat)

kernel_name = 'sequential_preLN__compressed_kv_cla__dense_activation_gelu__decode'

def setup_inputs():

    _w = (lambda a: (lambda t: t.to(torch.bfloat16) if t.is_floating_point() else t)(torch.as_tensor(a)))
    def _A_setup():
        B, H, Sq, Sk, D, M = 1, 32, 1, 16384, 128, 512
        Dc = 4 * D
        return {
            "x": _w((lambda *s: torch.randn(*s, dtype=torch.bfloat16) * 0.05)(B, Sq, M)),
            "c_kv": _w((lambda *s: torch.randn(*s, dtype=torch.bfloat16) * 0.8)(B, Sk, Dc)),
            "w_q": _w((lambda *s: torch.randn(*s, dtype=torch.bfloat16) * 3.2)(M, H, D) * (M ** -0.5)),
            "w_uk": _w((lambda *s: torch.randn(*s, dtype=torch.bfloat16) * 3.2)(Dc, H, D) * (Dc ** -0.5)),
            "w_uv": _w((lambda *s: torch.randn(*s, dtype=torch.bfloat16) * 0.8)(Dc, H, D) * (Dc ** -0.5)),
            "w_o": _w((lambda *s: torch.randn(*s, dtype=torch.bfloat16) * 0.8)(H, D, M) * ((H * D) ** -0.5)),
        }
    _A_in = _A_setup()

    def _B_setup():
        B, S, D, F = 1, 1, 512, 1792
        return {
            "x": _w((lambda *s: torch.randn(*s, dtype=torch.bfloat16) * 0.05)(B, S, D)),
            "w1": _w((lambda *s: torch.randn(*s, dtype=torch.bfloat16) * 3.2)(D, F) * (D ** -0.5)),
            "b1": _w((lambda *s: torch.randn(*s, dtype=torch.bfloat16) * 3.2)(F) * 0.01),
            "w2": _w((lambda *s: torch.randn(*s, dtype=torch.bfloat16) * 0.8)(F, D) * (F ** -0.5)),
            "b2": _w((lambda *s: torch.randn(*s, dtype=torch.bfloat16) * 0.8)(D) * 0.01),
        }
    _B_in = _B_setup()

    return {
        "A_x": _A_in["x"],
        "A_c_kv": _A_in["c_kv"],
        "A_w_q": _A_in["w_q"],
        "A_w_uk": _A_in["w_uk"],
        "A_w_uv": _A_in["w_uv"],
        "A_w_o": _A_in["w_o"],
        "B_x": _B_in["x"],
        "B_w1": _B_in["w1"],
        "B_b1": _B_in["b1"],
        "B_w2": _B_in["w2"],
        "B_b2": _B_in["b2"],
    }

def reference(A_x, A_c_kv, A_w_q, A_w_uk, A_w_uv, A_w_o, B_x, B_w1, B_b1, B_w2, B_b2):
    def _A_ref(x, c_kv, w_q, w_uk, w_uv, w_o):
        B, Sq, M = x.shape[0], x.shape[1], x.shape[2]
        Sk = c_kv.shape[1]
        H, D = w_q.shape[1], w_q.shape[2]
        q = torch.einsum("bqm,mhd->bhqd", x, w_q)
        k = torch.einsum("bkc,chd->bhkd", c_kv, w_uk)
        v = torch.einsum("bkc,chd->bhkd", c_kv, w_uv)
        scores = torch.einsum("bhqd,bhkd->bhqk", q, k) * (D ** -0.5)
        off = Sk - Sq
        qi = torch.arange(Sq)[:, None]
        kj = torch.arange(Sk)[None, :]
        cmask = kj <= (qi + off)
        scores = torch.where(cmask[None, None], scores, -1e9)
        p = _softmax(scores, axis=-1)
        ctx = torch.einsum("bhqk,bhkd->bhqd", p, v)
        return torch.einsum("bhqd,hdm->bqm", ctx, w_o)

    def _B_ref(x, w1, b1, w2, b2):
        h = torch.einsum("bsd,df->bsf", x, w1) + b1
        h = _gelu(h)
        return torch.einsum("bsf,fd->bsd", h, w2) + b2

    x = A_x
    h = x + _A_ref(_layernorm(x, axis=-1), A_c_kv, A_w_q, A_w_uk, A_w_uv, A_w_o)
    h2 = h + _B_ref(_layernorm(h, axis=-1), B_w1, B_b1, B_w2, B_b2)
    return h2
```

```python
NAME="sequential_preLN__compressed_kv_cla__dense_activation_gelu__decode"
class A:
    def __init__(self):
        self.lines=[]; self.nlabel=0
    def __call__(self, s):
        for l in s.strip("\n").split("\n"):
            self.lines.append("    "+l.strip() if not l.strip().endswith(":") else l.strip())
    def label(self, base="L"):
        self.nlabel+=1
        return f"{base}_{self.nlabel}"
    def text(self): return "\n".join(self.lines)+"\n"

HEADER_COMMENT=open("cdna_kernels/"+NAME+".s.ref").read().split("; Override launch")[0]

def wrap(body, grid=256, block=256, lds=0, vgpr=256, sgpr=102, accum=None, name=NAME+"_kernel"):
    if accum is None: accum=min(256,(vgpr+3)//4*4)
    s=HEADER_COMMENT
    s+=f"; @launch grid=({grid},1,1) block=({block},1,1) lds={lds}\n"
    s+='.amdgcn_target "amdgcn-amd-amdhsa--gfx950"\n.text\n'
    s+=f".globl {name}\n.p2align 8\n.type {name},@function\n{name}:\n"
    s+=body
    s+=f"""s_endpgm
.section .rodata,"a"
.p2align 6
.amdhsa_kernel {name}
  .amdhsa_next_free_vgpr {vgpr}
  .amdhsa_next_free_sgpr {sgpr}
  .amdhsa_accum_offset {accum}
  .amdhsa_group_segment_fixed_size 0
  .amdhsa_kernarg_size 112
  .amdhsa_user_sgpr_count 2
  .amdhsa_user_sgpr_kernarg_segment_ptr 1
  .amdhsa_system_sgpr_workgroup_id_x 1
.end_amdhsa_kernel
"""
    return s
```

```python
import re
TRANS=("v_exp_f32","v_log_f32","v_rcp_f32","v_rsq_f32","v_sqrt_f32","v_sin_f32","v_cos_f32","v_rcp_iflag_f32")
def regs(tok):
    tok=tok.strip()
    tok=re.sub(r"^-|^\|| \|$|^abs\(|\)$","",tok)
    m=re.fullmatch(r"([vsa])\[(\d+):(\d+)\]",tok)
    if m: return {f"{m.group(1)}{i}" for i in range(int(m.group(2)),int(m.group(3))+1)}
    m=re.fullmatch(r"([vsa])(\d+)",tok)
    if m: return {tok}
    if tok in ("vcc","vcc_lo","vcc_hi"): return {"vcc"}
    if tok in ("exec","exec_lo","exec_hi"): return {"exec"}
    if tok=="m0": return {"m0"}
    return set()
class I:
    pass
def parse(line):
    s=line.split(";")[0].strip()
    if not s or s.endswith(":") or s.startswith("."): return None
    parts=s.split(None,1)
    mn=parts[0]; rest=parts[1] if len(parts)>1 else ""
    ops=[]; cur=""; depth=0
    for ch in rest:
        if ch=="[": depth+=1
        if ch=="]": depth-=1
        if ch=="," and depth==0: ops.append(cur.strip()); cur=""
        else: cur+=ch
    if cur.strip(): ops.append(cur.strip())
    mods=""
    if ops:
        lp=ops[-1].split(None,1)
        ops[-1]=lp[0]; mods=lp[1] if len(lp)>1 else ""
    i=I(); i.mn=re.sub(r"_(e32|e64|dpp|sdwa)$","",mn); i.ops=ops; i.mods=mods; i.text=s
    i.dpp = mn.endswith("_dpp") or any(k in mods for k in ("row_","quad_perm","wave_"))
    i.w=set(); i.r=set(); i.kind="other"; i.A=i.B=i.C=set(); i.passes=0
    R=[regs(o) for o in ops]
    m=i.mn
    if m.startswith("v_mfma"):
        i.kind="mfma"; i.w=R[0]; i.A=R[1]; i.B=R[2]; i.C=R[3]; i.r=R[1]|R[2]|R[3]
        i.passes=8 if "32x32" in m else 4
    elif m.startswith("v_"):
        i.kind="valu"
        if "permlane" in m and "swap" in m:
            i.w=R[0]|R[1]; i.r=R[0]|R[1]
        elif m.startswith("v_cmp"):
            i.w=R[0]; i.r=set().union(*R[1:])
        elif m in("v_add_co_u32","v_sub_co_u32","v_addc_co_u32","v_subb_co_u32"):
            i.w=R[0]|R[1]; i.r=set().union(*R[2:])
        elif m=="v_nop": pass
        else:
            i.w=R[0]; i.r=set().union(*R[1:]) if len(R)>1 else set()
            if m.startswith("v_fmac") or m.startswith("v_dot2c") or m.startswith("v_writelane") or i.dpp: i.r|=R[0]
            if m=="v_cndmask_b32" and len(ops)==3: i.r|={"vcc"}
    elif m.startswith("ds_"):
        i.kind="ds"
        if m.startswith("ds_read") or "permute" in m or "swizzle" in m: i.w=R[0]; i.r=set().union(*R[1:])
        else: i.r=set().union(*R)
    elif m.startswith("buffer_") or m.startswith("global_"):
        i.kind="vmem"
        i.lds=" lds" in (" "+mods)
        if m in("buffer_wbl2","buffer_inv"): pass
        elif "load" in m and not i.lds: i.w=R[0]; i.r=set().union(*R[1:])
        else:
            i.r=set().union(*R)
            if i.lds: i.r|={"m0"}
            if "store" in m and ("x3" in m or "x4" in m): i.wide=R[0] if m.startswith("buffer") else R[1]
    elif m.startswith("s_"):
        i.kind="salu"
        if m.startswith(("s_cmp","s_cbranch","s_branch","s_waitcnt","s_barrier","s_nop","s_sleep","s_endpgm","s_setprio","s_bitcmp")):
            i.r=set().union(*R) if R else set()
        else:
            i.w=R[0] if R else set(); i.r=set().union(*R[1:]) if len(R)>1 else set()
            if "saveexec" in m: i.w|={"exec"}; i.r|={"exec"}
    i.states = int(ops[0],0)+1 if m=="s_nop" else 1
    return i
def need(p,c):
    n=0
    vw={x for x in p.w if x[0] in "va" and x!="vcc"}
    sw={x for x in p.w if x[0]=="s" or x=="vcc"}
    if p.kind=="valu":
        if c.kind=="mfma" and vw&c.r: n=max(n,2)
        if c.kind=="valu":
            if c.dpp and vw&c.r: n=max(n,2)
            if "permlane" in c.mn and vw&c.r: n=max(n,2)
            if c.mn in("v_readlane_b32","v_readfirstlane_b32") and vw&c.r: n=max(n,1)
            if p.mn in TRANS and c.mn not in TRANS and vw&c.r: n=max(n,1)
            if sw&c.r:
                n=max(n,4 if c.mn in("v_readlane_b32","v_writelane_b32") else 2)
        if c.kind=="vmem" and sw&c.r: n=max(n,5)
        if c.kind=="salu" and sw&c.r: n=max(n,1)
        if "exec" in p.w: n=max(n,5)
    if p.kind=="mfma":
        big=p.passes==8
        if c.kind=="mfma":
            if p.w&(c.A|c.B): n=max(n,12 if big else 8)
            if p.w&c.C and not (p.w==c.C and p.passes==c.passes): n=max(n,10 if big else 6)
            if p.w&c.w and not (p.w==c.C): n=max(n,10 if big else 6)
        elif c.kind in("valu","ds","vmem"):
            if p.w&(c.r|c.w): n=max(n,12 if big else 8)
            if c.kind=="valu" and p.C&c.w: n=max(n,7 if big else 3)
    if p.kind=="salu" and "m0" in p.w and c.kind=="vmem" and getattr(c,"lds",False): n=max(n,1)
    if p.kind=="vmem" and hasattr(p,"wide") and p.wide&c.w: n=max(n,2)
    if p.kind=="ds" and p.mn in("ds_write_b128","ds_write_b96") and c.kind=="valu" and (p.r&c.w): n=max(n,0)
    return n
W=14
def process(text):
    lines=text.split("\n")
    out=[]; hist=[]
    ninserted=0
    for line in lines:
        ins=parse(line)
        if ins is None:
            out.append(line); continue
        dist=0; req=0
        for p in reversed(hist[-W:]):
            n=need(p,ins)
            if n-dist>req: req=n-dist
            dist+=p.states
            if dist>=20: break
        if req>0:
            nop=parse(f"s_nop {req-1}")
            out.append(f"    s_nop {req-1}"); hist.append(nop); ninserted+=1
        out.append(line); hist.append(ins)
        if ins.mn in("s_branch","s_endpgm"): hist=[]
    seq=[]; labels={}
    for line in out:
        s=line.split(";")[0].strip()
        if s.endswith(":"): labels[s[:-1]]=len(seq); continue
        ins=parse(line)
        if ins is not None: seq.append(ins)
    errs=[]
    for k,ins in enumerate(seq):
        if ins.mn.startswith("s_cbranch") or ins.mn=="s_branch":
            tgt=labels.get(ins.ops[0])
            if tgt is None: continue
            back=[]; d=0; kk=k
            while kk>=0 and d<20:
                back.append((seq[kk],d)); d+=seq[kk].states
                if kk<k and seq[kk].mn in("s_branch","s_endpgm"): break
                kk-=1
            fd=0; t=tgt
            while t<len(seq) and fd<20:
                c=seq[t]
                for p,dp in back:
                    between = (dp if p is not ins else 0)+fd
                    if p is ins: continue
                    if need(p,c)>between: errs.append(f"edge {ins.text}: {p.text} -> {c.text} needs {need(p,c)} has {between}")
                fd+=c.states
                if c.mn in("s_branch","s_endpgm"): break
                t+=1
    if errs: raise Exception("hazard on branch edges:\n"+"\n".join(errs[:20]))
    return "\n".join(out), ninserted
```

```python
import sys, struct
from asmlib import *
import hz

def f2u(f): return struct.unpack("<I",struct.pack("<f",f))[0]

EPOCH=0
QP=0x10000; QA=0x30000; CP=0x40000; OP=0x60000; YP=0x70000; STAMPS=0x100000; PART=0x1000000
QIMG=131072; MISC=147456
MX=MISC; PX=MISC+1024
TX=24576
S3V=TX
S3S=TX+512
S4X=TX+640
CSX=TX+1024
M1X=TX+1536
STX=TX+2048
HV=TX+2304
HF=TX+3584
LDS_TOTAL=MISC+6144
NMLP=56

SRD=dict(x=4,ckv=8,wq=12,wuk=16,wuv=20,wo=24,w1=28,b1=32,w2=36,b2=40,out=44,ws=48)
KOFF=dict(x=0,ckv=8,wq=16,wuk=24,wuv=32,wo=40,w1=56,b1=64,w2=72,b2=80,out=88,ws=104)
SIZE=dict(x=1024,ckv=1<<24,wq=1<<22,wuk=1<<22,wuv=1<<22,wo=1<<22,w1=512*1792*2,b1=3584,w2=1792*1024,b2=1024,out=1024,ws=1<<28)
def srd(n): return f"s[{SRD[n]}:{SRD[n]+3}]"
TAG="s56"; EP="s57"; XG="s58"; RR="s59"; HH="s60"; JJ="s61"; KG="s62"; HG="s63"; SW="s64"; FS="s65"; TMO="s66"
def vr(b,n=4): return f"v[{b}:{b+n-1}]"

class G(A):
    def __init__(self, stamps=False, ldflag="nt", st="sc1", ld="sc1"):
        super().__init__(); self.stamps=stamps; self.ldflag=ldflag; self.st=st; self.ld=ld
        self.lq_issued=0; self.lq_done=0
    def stamp(self,k):
        if self.stamps: self(f"s_memrealtime s[{80+2*k}:{81+2*k}]")
    def lreset(self): self.lq_issued=0; self.lq_done=0
    def lds(self,instr):
        if self.lq_issued-self.lq_done>=15:
            self("s_waitcnt lgkmcnt(10)"); self.lq_done=self.lq_issued-10
        self(instr); self.lq_issued+=1; return self.lq_issued
    def lwait(self,t):
        if t<=self.lq_done: return
        n=self.lq_issued-t
        self(f"s_waitcnt lgkmcnt({n})"); self.lq_done=t
    def lwait_all(self):
        self("s_waitcnt lgkmcnt(0)"); self.lq_done=self.lq_issued
    def gfun(self,dst,src,tmp):
        self(f"v_and_b32 v{tmp}, 7, v{src}\nv_lshrrev_b32 v{dst}, 3, v{src}\nv_lshl_or_b32 v{dst}, v{tmp}, 1, v{dst}")
    def xrow(self,op,regs,tmps,steps=(16,32)):
        for st in steps:
            for r,t in zip(regs,tmps): self(f"v_mov_b32 v{t}, v{r}")
            for r,t in zip(regs,tmps): self(f"v_permlane{st}_swap_b32 v{r}, v{t}")
            for r,t in zip(regs,tmps): self(f"{op} v{r}, v{r}, v{t}")
    def inrow(self,op,regs,ctrls):
        for c in ctrls:
            for r in regs: self(f"{op}_dpp v{r}, v{r}, v{r} {c} row_mask:0xf bank_mask:0xf")
    def gather(self, loads, mask=None, sleep=0):
        masks = mask if isinstance(mask,list) else [mask]*len(loads)
        def ld(d,va,so,io):
            self(f"buffer_load_dwordx4 {vr(d)}, {va}, {srd('ws')}, {so} offen offset:{io} {self.ld}")
        cur=None
        def setexec(m):
            nonlocal cur
            m = m or "-1"
            if m!=cur: self(f"s_mov_b64 exec, {m}"); cur=m
        cur="-1"
        for (d,va,so,io),m in zip(loads,masks):
            setexec(m); ld(d,va,so,io)
        L=self.label("poll");
        self(f"s_mov_b32 {TMO}, 0")
        self(f"{L}:")
        cur=None
        self("s_waitcnt vmcnt(0)")
        self("s_mov_b32 s72, 0")
        for (d,va,so,io),m in zip(loads,masks):
            ok=self.label("ok")
            setexec(m)
            self(f"v_cmp_ne_u32 vcc, {TAG}, v{d+3}")
            self(f"s_cbranch_vccz {ok}")
            self("s_mov_b32 s72, 1")
            self("s_mov_b64 exec, vcc")
            ld(d,va,so,io)
            self(f"s_mov_b64 exec, {m or '-1'}")
            self(f"{ok}:")
        self("s_mov_b64 exec, -1")
        self(f"s_add_u32 {TMO}, {TMO}, 1")
        self(f"s_cmp_gt_u32 {TMO}, 20000")
        self("s_cbranch_scc1 L_end")
        self("s_cmp_lg_u32 s72, 0")
        self(f"s_cbranch_scc1 {L}")
    def mfma(self,d,a,b,c=None):
        cs = vr(d) if c is None else c
        self(f"v_mfma_f32_16x16x32_bf16 {vr(d)}, {vr(a)}, {vr(b)}, {cs}")
    def selectors(self, base, bp_lo8, bp_hi8, nrows, t0,t1,t2):
        self(f"v_mov_b32 v{t0}, {hex(bp_lo8)}")
        self(f"v_mov_b32 v{t1}, {hex(bp_hi8 if bp_hi8 is not None else 0x0c0c)}")
        self(f"v_cmp_gt_u32 vcc, 8, v2")
        self(f"v_cndmask_b32 v{t0}, v{t1}, v{t0}, vcc")
        if nrows<8:
            self(f"v_and_b32 v{t1}, 7, v2")
            self(f"v_mov_b32 v{t2}, 0x0c0c")
            self(f"v_cmp_gt_u32 vcc, {nrows}, v{t1}")
            self(f"v_cndmask_b32 v{t0}, v{t2}, v{t0}, vcc")
        self(f"v_or_b32 v{t1}, 0x0c0c0000, v{t0}")
        self(f"v_lshlrev_b32 v{t0}, 16, v{t0}")
        self(f"v_or_b32 v{t0}, 0x0c0c, v{t0}")
        self(f"v_and_b32 v{t2}, 1, v2")
        self(f"v_cmp_eq_u32 vcc, 0, v{t2}")
        self(f"v_cndmask_b32 v{t0}, v{t0}, v{t1}, vcc")
        self(f"v_bfe_u32 v{t2}, v2, 1, 2")
        self(f"v_mov_b32 v{t1}, 0x0c0c0c0c")
        for jd in range(4):
            self(f"v_cmp_eq_u32 vcc, {jd}, v{t2}")
            self(f"v_cndmask_b32 v{base+jd}, v{t1}, v{t0}, vcc")

def build(stamps=False, **kw):
    a=G(stamps=stamps, **kw)
    NT=a.ldflag
    a.stamp(0)
    a("s_cmp_ge_u32 s2, 256\ns_cbranch_scc1 L_end")
    for n in SRD: a(f"s_load_dwordx2 s[{SRD[n]}:{SRD[n]+1}], s[0:1], {KOFF[n]}")
    for n in SRD: a(f"s_mov_b32 s{SRD[n]+2}, {hex(SIZE[n])}\ns_mov_b32 s{SRD[n]+3}, 0x20000")
    a(f"""
    v_readfirstlane_b32 s3, v0
    v_and_b32 v1, 63, v0
    v_and_b32 v2, 15, v0
    v_bfe_u32 v3, v0, 4, 2
    s_lshr_b32 s3, s3, 6
    s_and_b32 {XG}, s2, 7
    s_lshr_b32 {RR}, s2, 3
    s_lshr_b32 s70, {RR}, 3
    s_lshl_b32 {HH}, {XG}, 2
    s_add_u32 {HH}, {HH}, s70
    s_and_b32 {JJ}, {RR}, 7
    s_lshr_b32 s70, {RR}, 1
    s_lshl_b32 {KG}, {XG}, 4
    s_add_u32 {KG}, {KG}, s70
    s_and_b32 {HG}, {RR}, 1
    s_sub_u32 {SW}, s3, 4
    s_mul_i32 {FS}, {XG}, 7
    s_add_u32 {FS}, {FS}, {RR}
    s_cmp_ge_u32 s3, 4
    s_cbranch_scc1 L_srole
    """)
    for z in range(4):
        a(f"v_add_u32 v36, {4*z}, v3")
        a.gfun(37,36,38)
        a(f"v_xor_b32 v37, v2, v37\nv_lshlrev_b32 v37, 4, v37\nv_lshl_add_u32 v{4+z}, v3, 10, v37")
    a(f"""
    s_lshl_b32 s70, {KG}, 17
    s_lshl_b32 s71, s3, 15
    s_add_u32 s70, s70, s71
    s_lshl_b32 s71, s3, 13
    s_waitcnt lgkmcnt(0)
    s_load_dword {EP}, s[{SRD['ws']}:{SRD['ws']+1}], {EPOCH}
    """)
    for cr in range(4):
        for kb in range(8):
            a(f"s_add_u32 s72, s70, {kb*4096+cr*256}")
            a(f"s_add_u32 m0, s71, {cr*32768+kb*1024}")
            a(f"buffer_load_dwordx4 v{4+(kb&3)}, {srd('ckv')}, s72 offen {NT} lds")
    a.stamp(1)
    a.gfun(36,2,37)
    a(f"s_lshl_b32 s72, s3, 13")
    for ks in range(4):
        a(f"""
        v_lshl_add_u32 v37, v3, 2, {ks}
        v_xor_b32 v37, v37, v36
        v_lshlrev_b32 v37, 4, v37
        v_lshl_add_u32 v38, v2, 8, v37
        v_add_u32 v{8+ks}, s72, v38
        v_add_u32 v{12+ks}, 0x10000, v{8+ks}
        v_lshl_add_u32 v38, v2, 10, v37
        v_add_u32 v{16+ks}, {QIMG}, v38
        """)
    a("v_lshrrev_b32 v36, 2, v1")
    a.gfun(37,36,38)
    a(f"""
    v_bfe_u32 v38, v1, 1, 1
    v_and_b32 v39, 1, v1
    v_lshlrev_b32 v39, 3, v39
    v_lshl_add_u32 v39, v36, 8, v39
    s_lshl_b32 s72, s3, 15
    v_add_u32 v39, s72, v39
    """)
    for ct in range(8):
        a(f"""
        v_add_u32 v36, {2*ct}, v38
        v_xor_b32 v36, v36, v37
        v_lshl_add_u32 v{20+ct}, v36, 4, v39
        """)
    a(f"""
    v_lshlrev_b32 v29, 4, v1
    v_add_u32 v29, {PX}, v29
    s_lshl_b32 s72, s3, 10
    v_add_u32 v28, s72, v29
    v_lshlrev_b32 v31, 4, v2
    v_add_u32 v31, {MX}, v31
    s_lshl_b32 s72, s3, 2
    v_add_u32 v30, s72, v31
    v_mov_b32 v32, 0x3f803f80
    v_mov_b32 v33, 0x3f803f80
    v_mov_b32 v34, 0x3f803f80
    v_mov_b32 v35, 0x3f803f80
    """)
    a(f"""
    s_lshl_b32 s72, {HG}, 22
    s_lshl_b32 s73, s3, 16
    s_add_u32 s72, s72, s73
    s_lshl_b32 s73, {KG}, 8
    s_add_u32 s72, s72, s73
    s_add_u32 s74, s72, {PART}
    s_add_u32 s75, s74, 0x8000
    v_lshlrev_b32 v124, 18, v2
    v_lshl_add_u32 v124, v3, 4, v124
    s_waitcnt lgkmcnt(0)
    """)
    tagcalc=f"""
    s_add_u32 {EP}, {EP}, 1
    s_and_b32 {TAG}, {EP}, 0x3fff
    s_lshl_b32 s72, {EP}, 2
    s_and_b32 s72, s72, 0x3fff0000
    s_or_b32 {TAG}, {TAG}, s72
    """
    a(tagcalc)
    for g in range(6): a(f"v_mov_b32 v{103+4*g}, {TAG}")
    a("s_barrier")
    a.stamp(2)
    a.lreset()
    QF=128; AB=192
    qt={}
    for cr in range(4):
        for ks in range(4):
            qt[cr,ks]=a.lds(f"ds_read_b128 {vr(QF+16*cr+4*ks)}, v{16+ks} offset:{cr*256}")
    at={}
    def areads(cr):
        a(f"s_waitcnt vmcnt({24-8*cr})")
        for ks in range(4):
            for t in range(2):
                base=(8 if cr<2 else 12)+ks
                at[cr,t,ks]=a.lds(f"ds_read_b128 {vr(AB+32*(cr&1)+16*t+4*ks)}, v{base} offset:{(cr&1)*32768+t*4096}")
    areads(0)
    for cr in range(4):
        if cr<3:
            if cr>=1: pass
            areads(cr+1) if cr==0 else None
        for ks in range(4):
            for t in range(2):
                a.lwait(at[cr,t,ks])
                a.mfma(40+4*t, AB+32*(cr&1)+16*t+4*ks, QF+16*cr+4*ks, "0" if (cr==0 and ks==0) else None)
        if cr+2<4: areads(cr+2)
    a.stamp(3)
    a("""
    v_max3_f32 v36, v40, v41, v42
    v_max3_f32 v37, v43, v44, v45
    v_max3_f32 v36, v36, v46, v47
    v_max_f32 v36, v36, v37
    """)
    a.xrow("v_max_f32",[36],[37])
    a("ds_write_b32 v30, v36\ns_waitcnt lgkmcnt(0)\ns_barrier")
    a.lreset()
    tm=a.lds("ds_read_b128 v[36:39], v31")
    PVF=128
    trl=[(ct,w2,h2) for ct in range(8) for w2 in range(4) for h2 in range(2)]
    tt={}
    def tr(k):
        ct,w2,h2=trl[k]
        tt[ct,w2,h2]=a.lds(f"ds_read_b64_tr_b16 {vr(PVF+16*ct+4*w2+2*h2,2)}, v{20+ct} offset:{w2*8192+h2*4096}")
    k=0
    for _ in range(12): tr(k); k+=1
    a.lwait(tm)
    a("""
    v_max3_f32 v36, v36, v37, v38
    v_max_f32 v36, v36, v39
    v_ceil_f32 v36, v36
    """)
    for i in range(8): a(f"v_sub_f32 v{40+i}, v{40+i}, v36")
    for i in range(8): a(f"v_exp_f32 v{40+i}, v{40+i}")
    for _ in range(8): tr(k); k+=1
    for i in range(4): a(f"v_cvt_pk_bf16_f32 v{48+i}, v{40+2*i}, v{41+2*i}")
    a.lds("ds_write_b128 v28, v[48:51]")
    a.lwait_all()
    a("s_barrier")
    pt=[a.lds(f"ds_read_b128 {vr(48+4*w2)}, v29 offset:{w2*1024}") for w2 in range(4)]
    for _ in range(8): tr(k); k+=1
    for w2 in range(4):
        a.lwait(pt[w2])
        a.mfma(64,32,48+4*w2,"0" if w2==0 else None)
    def epi(half):
        gb=100+12*half
        P=[gb+0,gb+1,gb+2,gb+4,gb+5,gb+6,gb+8,gb+9]
        for c4 in range(4):
            o=68+4*(4*half+c4)
            a(f"v_cvt_pk_bf16_f32 v{P[2*c4]}, v{o}, v{o+1}")
            a(f"v_cvt_pk_bf16_f32 v{P[2*c4+1]}, v{o+2}, v{o+3}")
        a(f"v_mov_b32 v{gb+10}, v39")
        for g in range(3):
            a(f"buffer_store_dwordx4 {vr(gb+4*g)}, v124, {srd('ws')}, s{74+half} offen offset:{g*64} {a.st}")
    for ct in range(8):
        for w2 in range(4):
            a.lwait(tt[ct,w2,1])
            a.mfma(68+4*ct, PVF+16*ct+4*w2, 48+4*w2, "0" if w2==0 else None)
            for _ in range(2):
                if k<64: tr(k); k+=1
        if ct==1:
            a("""
            v_cvt_pk_bf16_f32 v37, v64, v64
            v_lshlrev_b32 v37, 16, v37
            v_sub_f32 v37, v64, v37
            v_cvt_pk_bf16_f32 v37, v64, v37
            v_mov_b32 v39, 0
            v_cmp_eq_u32 vcc, 1, v3
            v_cndmask_b32 v39, v39, v37, vcc
            v_cmp_eq_u32 vcc, 0, v3
            v_cndmask_b32 v39, v39, v36, vcc
            """)
        if ct==5: epi(0)
    a("s_barrier")
    epi(1)
    a.stamp(4)
    a("s_branch L_fin")

    a("L_srole:")
    a("s_setprio 3")
    a(f"s_cmp_lg_u32 {SW}, 0\ns_cbranch_scc1 L_s_noS1")
    WQ=64; WUK=128; AU=192
    a(f"""
    v_lshlrev_b32 v4, 4, v1
    v_lshlrev_b32 v5, 5, v3
    v_lshlrev_b32 v6, 17, v3
    v_lshl_add_u32 v6, v2, 4, v6
    v_lshlrev_b32 v7, 15, v2
    v_lshl_add_u32 v7, v3, 4, v7
    s_lshl_b32 s70, {JJ}, 7
    s_lshl_b32 s71, {JJ}, 19
    s_lshl_b32 s72, {HH}, 8
    s_add_u32 s71, s71, s72
    s_waitcnt lgkmcnt(0)
    s_load_dword {EP}, s[{SRD['ws']}:{SRD['ws']+1}], {EPOCH}
    buffer_load_dwordx4 v[8:11], v5, {srd('x')}, s70 offen
    buffer_load_dwordx4 v[12:15], v5, {srd('x')}, s70 offen offset:16
    buffer_load_dwordx4 v[16:19], v4, {srd('x')}, 0 offen
    """)
    for u in range(16):
        a(f"s_add_u32 s72, s71, {u*8192}")
        a(f"buffer_load_dwordx4 {vr(WQ+4*u)}, v6, {srd('wq')}, s72 offen {NT}")
    for t in range(4):
        a(f"s_add_u32 s72, s71, {t*8192}")
        for s in range(4):
            a(f"buffer_load_dwordx4 {vr(WUK+16*t+4*s)}, v7, {srd('wuk')}, s72 offen offset:{s*64} {NT}")
    a.stamp(1)
    a.selectors(20,0x0100,0x0504,8,36,37,38)
    a.selectors(24,0x0302,0x0504,8,36,37,38)
    a("v_mov_b32 v28, 0x3f803f80")
    a("s_waitcnt vmcnt(33)")
    for u in range(16):
        for jd in range(4):
            a(f"v_perm_b32 v{AU+4*u+jd}, v28, v{8+u//2}, v{20+4*(u&1)+jd}")
    a("s_waitcnt vmcnt(32)")
    for i in range(4):
        a(f"v_lshlrev_b32 v{40+2*i}, 16, v{16+i}\nv_and_b32 v{41+2*i}, 0xffff0000, v{16+i}")
    a("v_add_f32 v36, v40, v41\nv_mul_f32 v37, v40, v40\nv_fmac_f32 v37, v41, v41")
    for i in range(2,8):
        a(f"v_add_f32 v36, v36, v{40+i}\nv_fmac_f32 v37, v{40+i}, v{40+i}")
    ROWRED=["quad_perm:[1,0,3,2]","quad_perm:[2,3,0,1]","row_half_mirror","row_mirror"]
    a.inrow("v_add_f32",[36,37],ROWRED)
    a.xrow("v_add_f32",[36,37],[38,39])
    a(f"""
    v_mul_f32 v36, {hex(f2u(1/512))}, v36
    v_mul_f32 v37, {hex(f2u(1/512))}, v37
    v_fma_f32 v37, -v36, v36, v37
    v_max_f32 v37, 0, v37
    v_add_f32 v37, {hex(f2u(1e-5))}, v37
    v_rsq_f32 v37, v37
    """)
    for u in range(16):
        a(f"s_waitcnt vmcnt({31-u})")
        a.mfma(40,AU+4*u,WQ+4*u,"0" if u==0 else None)
    a.stamp(2)
    a("s_waitcnt lgkmcnt(0)")
    a(tagcalc)
    a(f"""
    v_lshl_add_u32 v4, v2, 1, v3
    v_lshlrev_b32 v4, 4, v4
    s_lshl_b32 s70, {HH}, 12
    s_add_u32 s70, s70, {QP}
    s_lshl_b32 s71, {JJ}, 9
    s_add_u32 s71, s71, s70
    v_mov_b32 v50, 0
    v_mov_b32 v51, {TAG}
    """)
    for r in range(4): a(f"v_mov_b32 v{44+r}, v{40+r}")
    for r in range(4): a(f"v_permlane32_swap_b32 v{40+r}, v{44+r}")
    for r in range(4): a(f"v_fma_f32 v{40+r}, -v36, v{44+r}, v{40+r}")
    for r in range(4): a(f"v_mul_f32 v{40+r}, v37, v{40+r}")
    a(f"""
    v_cvt_pk_bf16_f32 v48, v40, v41
    v_cvt_pk_bf16_f32 v49, v42, v43
    s_mov_b32 exec_hi, 0
    buffer_store_dwordx4 v[48:51], v4, {srd('ws')}, s71 offen {a.st}
    s_mov_b64 exec, -1
    """)
    a(f"""
    v_lshrrev_b32 v5, 3, v2
    v_and_b32 v6, 7, v2
    v_lshl_add_u32 v7, v3, 1, v5
    v_lshlrev_b32 v7, 4, v7
    v_lshl_add_u32 v7, v6, 9, v7
    v_sub_u32 v30, 0, v5
    v_not_b32 v31, v30
    """)
    a.gather([(64+4*s,"v7","s70",s*128) for s in range(4)])
    a.stamp(3)
    def halfpos(d):
        a(f"v_and_b32 v{d+2}, v{d}, v30\nv_and_b32 v{d+3}, v{d+1}, v30\nv_and_b32 v{d}, v{d}, v31\nv_and_b32 v{d+1}, v{d+1}, v31")
    for s in range(4): halfpos(64+4*s)
    for s in range(4):
        for t in range(4):
            a.mfma(80+4*t,64+4*s,WUK+16*t+4*s,"0" if s==0 else None)
    for t in range(4):
        a(f"v_add_f32 v{80+4*t}, v{80+4*t}, v{81+4*t}\nv_add_f32 v{82+4*t}, v{82+4*t}, v{83+4*t}")
    for t in range(4):
        a(f"v_add_f32 v{40+t}, v{80+4*t}, v{82+4*t}")
    a.xrow("v_add_f32",[40,41,42,43],[44,45,46,47])
    SC=1.4426950408889634/(128**0.5)
    for t in range(4): a(f"v_mul_f32 v{40+t}, {hex(f2u(SC))}, v{40+t}")
    a(f"""
    v_cvt_pk_bf16_f32 v48, v40, v41
    v_cvt_pk_bf16_f32 v49, v42, v43
    v_lshlrev_b32 v4, 4, v2
    s_lshl_b32 s70, {HH}, 11
    s_lshl_b32 s71, {JJ}, 8
    s_add_u32 s70, s70, s71
    s_add_u32 s70, s70, {QA}
    s_mov_b64 exec, 0xffff
    buffer_store_dwordx4 v[48:51], v4, {srd('ws')}, s70 offen {a.st}
    s_mov_b64 exec, -1
    """)
    a.stamp(4)
    a("s_branch L_s_qg")
    a("L_s_noS1:")
    a(f"""
    s_waitcnt lgkmcnt(0)
    s_load_dword {EP}, s[{SRD['ws']}:{SRD['ws']+1}], {EPOCH}
    v_lshrrev_b32 v5, 3, v2
    v_sub_u32 v30, 0, v5
    v_not_b32 v31, v30
    s_waitcnt lgkmcnt(0)
    """)
    a(tagcalc)
    a("L_s_qg:")
    a(f"""
    v_lshlrev_b32 v4, 4, v1
    s_lshl_b32 s70, {HG}, 15
    s_lshl_b32 s71, {SW}, 13
    s_add_u32 s70, s70, s71
    s_add_u32 s70, s70, {QA}
    s_add_u32 s71, s70, 4096
    v_bfe_u32 v5, v1, 1, 4
    v_lshrrev_b32 v6, 5, v1
    v_and_b32 v7, 1, v1
    v_lshlrev_b32 v7, 3, v7
    v_lshl_add_u32 v7, v6, 8, v7
    """)
    for hh in range(4):
        a(f"""
        s_lshl_b32 s72, {SW}, 2
        s_add_u32 s72, s72, {hh}
        s_and_b32 s73, s72, 7
        s_lshl_b32 s73, s73, 1
        s_lshr_b32 s74, s72, 3
        s_or_b32 s73, s73, s74
        s_lshl_b32 s72, s72, 10
        s_add_u32 s72, s72, {QIMG}
        v_xor_b32 v6, s73, v5
        v_lshl_add_u32 v6, v6, 4, v7
        v_add_u32 v{8+hh}, s72, v6
        """)
    a.gather([(64+4*u,"v4","s70" if u<4 else "s71",(u&3)*1024) for u in range(8)])
    for u in range(8):
        a(f"ds_write_b64 v{8+(u>>1)}, {vr(64+4*u,2)} offset:{(u&1)*512}")
    a("s_waitcnt lgkmcnt(0)\ns_barrier")
    a.stamp(5)
    RUV=128; RO=144; R1=160; R2=192
    a(f"""
    v_lshrrev_b32 v4, 2, v1
    v_and_b32 v5, 3, v1
    v_lshlrev_b32 v5, 4, v5
    v_lshl_add_u32 v6, v4, 13, v5
    s_lshl_b32 s70, {JJ}, 19
    s_lshl_b32 s71, {HH}, 8
    s_add_u32 s70, s70, s71
    s_lshl_b32 s71, {SW}, 6
    s_add_u32 s70, s70, s71
    """)
    for u in range(4):
        a(f"s_add_u32 s72, s70, {u*16*8192}")
        a(f"buffer_load_dwordx4 {vr(RUV+4*u)}, v6, {srd('wuv')}, s72 offen {NT}")
    a(f"""
    v_lshrrev_b32 v6, 1, v1
    v_and_b32 v7, 1, v1
    v_lshlrev_b32 v7, 4, v7
    v_lshl_add_u32 v6, v6, 10, v7
    s_lshl_b32 s70, {XG}, 2
    s_add_u32 s70, s70, {SW}
    s_lshl_b32 s70, s70, 17
    s_lshl_b32 s71, {RR}, 5
    s_add_u32 s70, s70, s71
    """)
    for u in range(4):
        a(f"s_add_u32 s72, s70, {u*32*1024}")
        a(f"buffer_load_dwordx4 {vr(RO+4*u)}, v6, {srd('wo')}, s72 offen {NT}")
    a(f"s_cmp_ge_u32 {RR}, 7\ns_cbranch_scc1 L_s_nomlpw")
    a(f"""
    v_mul_u32_u24 v6, 3584, v4
    v_add_u32 v6, v6, v5
    s_mul_i32 s70, {SW}, {128*3584}
    s_lshl_b32 s71, {FS}, 6
    s_add_u32 s70, s70, s71
    """)
    for u in range(8):
        a(f"s_add_u32 s72, s70, {u*16*3584}")
        a(f"buffer_load_dwordx4 {vr(R1+4*u)}, v6, {srd('w1')}, s72 offen {NT}")
    a(f"""
    v_lshlrev_b32 v6, 10, v3
    v_lshl_add_u32 v6, v2, 4, v6
    s_lshl_b32 s70, {FS}, 15
    s_lshl_b32 s71, {SW}, 8
    s_add_u32 s70, s70, s71
    """)
    for u in range(8):
        a(f"s_add_u32 s72, s70, {u*4096}")
        a(f"buffer_load_dwordx4 {vr(R2+4*u)}, v6, {srd('w2')}, s72 offen {NT}")
    a(f"""
    v_bfe_u32 v6, v2, 2, 1
    v_lshlrev_b32 v6, 4, v6
    v_lshl_add_u32 v6, v3, 2, v6
    v_and_b32 v7, 3, v2
    v_add_u32 v20, v6, v7
    v_lshlrev_b32 v6, 1, v20
    s_lshl_b32 s70, {FS}, 6
    buffer_load_ushort v224, v6, {srd('b1')}, s70 offen
    v_and_b32 v6, 1, v3
    v_lshlrev_b32 v6, 7, v6
    v_lshl_add_u32 v21, v2, 3, v6
    s_lshl_b32 s70, {SW}, 8
    buffer_load_dwordx2 v[226:227], v21, {srd('x')}, s70 offen
    v_and_b32 v6, 7, v2
    v_lshlrev_b32 v6, 5, v6
    v_lshl_add_u32 v22, v3, 3, v6
    buffer_load_dwordx2 v[228:229], v22, {srd('b2')}, s70 offen
    """)
    a("L_s_nomlpw:")
    a("s_barrier\ns_barrier\ns_barrier")
    a.stamp(6)
    FUV=64; FO=80; F1=96; F2=128
    a(f"""
    s_lshl_b32 s70, {SW}, 15
    v_lshlrev_b32 v4, 4, v1
    v_add_u32 v4, s70, v4
    v_bfe_u32 v5, v1, 2, 2
    v_and_b32 v6, 3, v1
    v_lshlrev_b32 v6, 3, v6
    v_add_u32 v6, s70, v6
    v_lshl_add_u32 v7, v3, 3, v5
    v_lshl_add_u32 v8, v7, 6, v6
    v_lshl_add_u32 v9, v7, 5, v6
    v_lshl_add_u32 v7, v3, 2, v5
    v_lshl_add_u32 v10, v7, 8, v6
    s_waitcnt vmcnt(0)
    """)
    a.lreset()
    for u in range(4): a.lds(f"ds_write_b128 v4, {vr(RUV+4*u)} offset:{u*1024}")
    for u in range(4): a.lds(f"ds_write_b128 v4, {vr(RO+4*u)} offset:{4096+u*1024}")
    for dt in range(2):
        for s in range(2):
            for h2 in range(2):
                a.lds(f"ds_read_b64_tr_b16 {vr(FUV+8*dt+4*s+2*h2,2)}, v8 offset:{(32*s+4*h2)*64+dt*32}")
    for s in range(4):
        for h2 in range(2):
            a.lds(f"ds_read_b64_tr_b16 {vr(FO+4*s+2*h2,2)}, v9 offset:{4096+(32*s+4*h2)*32}")
    a.lwait_all()
    a(f"s_cmp_ge_u32 {RR}, 7\ns_cbranch_scc1 L_s_nomlpf")
    for u in range(8): a.lds(f"ds_write_b128 v4, {vr(R1+4*u)} offset:{8192+u*1024}")
    for u in range(8): a.lds(f"ds_write_b128 v4, {vr(R2+4*u)} offset:{16384+u*1024}")
    for ft in range(2):
        for s in range(4):
            for h2 in range(2):
                a.lds(f"ds_read_b64_tr_b16 {vr(F1+16*ft+4*s+2*h2,2)}, v8 offset:{8192+(32*s+4*h2)*64+ft*32}")
    for mt in range(8):
        for h2 in range(2):
            a.lds(f"ds_read_b64_tr_b16 {vr(F2+4*mt+2*h2,2)}, v10 offset:{16384+16*h2*256+mt*32}")
    a.lwait_all()
    a("v_mov_b32 v32, 0x3f803f80\nv_mov_b32 v33, 0x3f803f80\nv_mov_b32 v34, 0x3f803f80\nv_mov_b32 v35, 0x3f803f80")
    for ft in range(2):
        for s in range(4): a.mfma(40+4*ft,F1+16*ft+4*s,32,"0" if s==0 else None)
    a(f"""
    s_lshl_b32 s70, {SW}, 7
    v_lshlrev_b32 v23, 4, v3
    v_add_u32 v23, s70, v23
    ds_write_b128 v23, v[40:43] offset:{CSX}
    ds_write_b128 v23, v[44:47] offset:{CSX+64}
    """)
    a("L_s_nomlpf:")
    a.selectors(24,0x0302,None,6,36,37,38)
    a(f"""
    v_lshlrev_b32 v4, 4, v1
    s_lshl_b32 s70, {HH}, 3
    s_add_u32 s70, s70, {JJ}
    s_lshl_b32 s70, s70, 15
    s_lshl_b32 s71, {SW}, 13
    s_add_u32 s70, s70, s71
    s_add_u32 s70, s70, {PART}
    s_add_u32 s71, s70, 4096
    s_mov_b32 s76, 0x0fff0fff
    s_mov_b32 s77, 0x0fff0fff
    v_cmp_ne_u32 vcc, 8, v2
    v_cndmask_b32 v11, 0, -1, vcc
    """)
    for i in range(32): a(f"v_mov_b32 v{160+i}, 0")
    a(f"""
    v_lshrrev_b32 v5, 2, v2
    v_and_b32 v6, 3, v2
    v_mul_u32_u24 v5, 3, v5
    v_lshl_add_u32 v5, v3, 1, v5
    s_lshl_b32 s72, {SW}, 7
    s_add_u32 s72, s72, {S3V}
    """)
    for k2 in range(2):
        a(f"""
        v_add_u32 v7, {k2}, v5
        v_lshrrev_b32 v8, 1, v7
        v_and_b32 v7, 1, v7
        v_lshlrev_b32 v8, 5, v8
        v_lshl_add_u32 v8, v6, 3, v8
        v_lshl_add_u32 v8, v7, 2, v8
        v_add_u32 v{12+k2}, s72, v8
        """)
    a.gather([(160+4*u,"v4","s70" if u<4 else "s71",(u&3)*1024) for u in range(8)], mask="s[76:77]")
    a.stamp(7)
    for u in range(8): a(f"v_mov_b32_dpp v{40+u}, v{162+4*u} row_newbcast:8 row_mask:0xf bank_mask:0xf")
    for u in range(8): a(f"v_and_b32 v{162+4*u}, v{162+4*u}, v11")
    a("""
    v_max3_f32 v36, v40, v41, v42
    v_max3_f32 v37, v43, v44, v45
    v_max3_f32 v36, v36, v46, v47
    v_max_f32 v36, v36, v37
    """)
    a.xrow("v_max_f32",[36],[37])
    for u in range(8): a(f"v_sub_f32 v{40+u}, v{40+u}, v36")
    for u in range(8): a(f"v_cvt_i32_f32 v{40+u}, v{40+u}")
    for u in range(8): a(f"v_ldexp_f32 v{40+u}, 1.0, v{40+u}")
    for u in range(8):
        for jd in range(3): a(f"v_perm_b32 v{192+4*u+jd}, v{40+u}, v{40+u}, v{24+jd}")
        a(f"v_mov_b32 v{195+4*u}, 0")
    for u in range(8): a.mfma(48,192+4*u,160+4*u,"0" if u==0 else None)
    a(f"""
    v_cvt_pk_bf16_f32 v52, v48, v49
    v_cvt_pk_bf16_f32 v53, v50, v51
    v_add_f32 v37, v48, v49
    s_lshl_b32 s72, {SW}, 3
    s_add_u32 s72, s72, {S3S}
    v_mov_b32 v5, s72
    s_mov_b64 exec, 0x00ff0fff
    ds_write_b32 v12, v52
    s_mov_b64 exec, 0x0fff
    ds_write_b32 v13, v53
    s_mov_b64 exec, 0x02000000
    ds_write_b64 v5, v[36:37]
    s_mov_b64 exec, -1
    s_waitcnt lgkmcnt(0)
    s_barrier
    """)
    if stamps:
        a(f"""
        v_lshlrev_b32 v5, 4, v1
        ds_read_b128 v[40:43], v5 offset:{TX}
        s_lshl_b32 s72, s2, 10
        s_add_u32 s72, s72, 0x200000
        s_waitcnt lgkmcnt(0)
        buffer_store_dwordx4 v[40:43], v5, {srd('ws')}, s72 offen
        s_nop 2
        """)
    a(f"""
    v_and_b32 v6, 3, v2
    v_lshlrev_b32 v5, 7, v6
    v_lshl_add_u32 v5, v3, 4, v5
    v_mov_b32 v7, {S3S}
    ds_read_b128 v[40:43], v5 offset:{S3V}
    ds_read_b128 v[44:47], v5 offset:{S3V+64}
    ds_read_b128 v[48:51], v7
    ds_read_b128 v[52:55], v7 offset:16
    v_lshlrev_b32 v6, 3, v6
    ds_read_b32 v56, v6 offset:{S3S}
    s_waitcnt lgkmcnt(3)
    """)
    for dt in range(2):
        for s in range(2): a.mfma(160+4*dt,FUV+8*dt+4*s,40+4*s,"0" if s==0 else None)
    a("""
    s_waitcnt lgkmcnt(0)
    v_max3_f32 v36, v48, v50, v52
    v_max_f32 v36, v36, v54
    v_sub_f32 v48, v48, v36
    v_sub_f32 v50, v50, v36
    v_sub_f32 v52, v52, v36
    v_sub_f32 v54, v54, v36
    v_sub_f32 v56, v56, v36
    v_exp_f32 v48, v48
    v_exp_f32 v50, v50
    v_exp_f32 v52, v52
    v_exp_f32 v54, v54
    v_exp_f32 v56, v56
    v_mul_f32 v37, v48, v49
    v_fmac_f32 v37, v50, v51
    v_fmac_f32 v37, v52, v53
    v_fmac_f32 v37, v54, v55
    v_rcp_f32 v37, v37
    v_mul_f32 v56, v56, v37
    """)
    for i in range(8): a(f"v_mul_f32 v{160+i}, v{160+i}, v56")
    a.inrow("v_add_f32",list(range(160,168)),["quad_perm:[1,0,3,2]","quad_perm:[2,3,0,1]"])
    a(f"""
    v_cvt_pk_bf16_f32 v48, v160, v161
    v_cvt_pk_bf16_f32 v49, v162, v163
    v_cvt_pk_bf16_f32 v52, v164, v165
    v_cvt_pk_bf16_f32 v53, v166, v167
    v_cmp_eq_u32 vcc, 1, v2
    v_cndmask_b32 v48, v48, v52, vcc
    v_cndmask_b32 v49, v49, v53, vcc
    v_mov_b32 v50, 0
    v_mov_b32 v51, {TAG}
    v_lshl_add_u32 v5, v2, 2, v3
    v_lshlrev_b32 v5, 4, v5
    s_lshl_b32 s70, {HH}, 3
    s_add_u32 s70, s70, {JJ}
    s_lshl_b32 s70, s70, 9
    s_lshl_b32 s71, {SW}, 7
    s_add_u32 s70, s70, s71
    s_add_u32 s70, s70, {CP}
    s_mov_b32 s76, 0x00030003
    s_mov_b32 s77, 0x00030003
    s_mov_b64 exec, s[76:77]
    buffer_store_dwordx4 v[48:51], v5, {srd('ws')}, s70 offen {a.st}
    s_mov_b64 exec, -1
    """)
    a(f"s_cmp_ge_u32 {RR}, 7\ns_cbranch_scc1 L_s_nocs")
    a(f"""
    v_lshlrev_b32 v19, 2, v20
    ds_read2_b32 v[40:41], v19 offset0:{0} offset1:{32}
    """.replace("v19 offset0","v18 offset0").replace("ds_read2_b32",f"v_add_u32 v18, {CSX}, v19\n    ds_read2_b32"))
    a(f"""
    ds_read2_b32 v[42:43], v18 offset0:64 offset1:96
    s_waitcnt lgkmcnt(0)
    v_add_f32 v40, v40, v41
    v_add_f32 v42, v42, v43
    v_add_f32 v225, v40, v42
    v_lshlrev_b32 v224, 16, v224
    """)
    a("L_s_nocs:")
    a(f"""
    v_lshrrev_b32 v5, 3, v2
    v_and_b32 v6, 7, v2
    v_lshl_add_u32 v7, v3, 1, v5
    v_lshlrev_b32 v7, 4, v7
    v_lshl_add_u32 v7, v6, 9, v7
    s_lshl_b32 s70, {XG}, 2
    s_add_u32 s70, s70, {SW}
    s_lshl_b32 s70, s70, 12
    s_add_u32 s70, s70, {CP}
    s_lshl_b32 s71, {SW}, 6
    s_add_u32 s71, s71, {S4X}
    v_lshlrev_b32 v8, 2, v2
    v_add_u32 v8, s71, v8
    """)
    a.gather([(160+4*s,"v7","s70",s*128) for s in range(4)])
    a.stamp(8)
    for s in range(4): halfpos(160+4*s)
    for s in range(4): a.mfma(40,160+4*s,FO+4*s,"0" if s==0 else None)
    a("v_add_f32 v40, v40, v41\nv_add_f32 v42, v42, v43\nv_add_f32 v40, v40, v42")
    a.xrow("v_add_f32",[40],[41])
    a(f"""
    ds_write_b32 v8, v40
    s_waitcnt lgkmcnt(0)
    s_barrier
    s_cmp_lg_u32 {SW}, 0
    s_cbranch_scc1 L_s_s4done
    v_and_b32 v5, 3, v1
    v_lshlrev_b32 v5, 4, v5
    ds_read_b128 v[40:43], v5 offset:{S4X}
    ds_read_b128 v[44:47], v5 offset:{S4X+64}
    ds_read_b128 v[48:51], v5 offset:{S4X+128}
    ds_read_b128 v[52:55], v5 offset:{S4X+192}
    s_lshl_b32 s70, {XG}, 11
    s_lshl_b32 s71, {RR}, 6
    s_add_u32 s70, s70, s71
    s_add_u32 s70, s70, {OP}
    s_waitcnt lgkmcnt(0)
    """)
    for r in range(4): a(f"v_add_f32 v{40+r}, v{40+r}, v{44+r}\nv_add_f32 v{48+r}, v{48+r}, v{52+r}")
    for r in range(4): a(f"v_add_f32 v{40+r}, v{40+r}, v{48+r}")
    a(f"""
    v_cvt_pk_bf16_f32 v48, v40, v41
    v_cvt_pk_bf16_f32 v49, v42, v43
    v_mov_b32 v50, 0
    v_mov_b32 v51, {TAG}
    s_mov_b64 exec, 15
    buffer_store_dwordx4 v[48:51], v5, {srd('ws')}, s70 offen {a.st}
    s_mov_b64 exec, -1
    L_s_s4done:
    s_cmp_ge_u32 {RR}, 7
    s_cbranch_scc1 L_s_final
    """)
    a(f"""
    v_and_b32 v5, 1, v2
    v_lshlrev_b32 v5, 4, v5
    v_mov_b32 v6, 0x3f80
    v_lshlrev_b32 v5, v5, v6
    v_lshrrev_b32 v6, 1, v2
    """)
    for aa in range(2):
        for jd in range(2):
            a(f"v_cmp_eq_u32 vcc, {2*aa+jd}, v6\nv_cndmask_b32 v{24+4*aa+jd}, 0, v5, vcc")
        a(f"v_mov_b32 v{26+4*aa}, 0\nv_mov_b32 v{27+4*aa}, 0")
    a(f"""
    v_cmp_gt_u32 vcc, 2, v3
    v_cndmask_b32 v226, 0, v226, vcc
    v_cndmask_b32 v227, 0, v227, vcc
    v_lshlrev_b32 v40, 16, v226
    v_and_b32 v41, 0xffff0000, v226
    v_lshlrev_b32 v42, 16, v227
    v_and_b32 v43, 0xffff0000, v227
    v_lshlrev_b32 v7, 11, v3
    v_lshl_add_u32 v7, v2, 4, v7
    s_lshl_b32 s70, {SW}, 9
    s_add_u32 s70, s70, {OP}
    s_add_u32 s71, s70, 8192
    s_lshl_b32 s72, {SW}, 8
    s_add_u32 s73, s72, {HV}
    v_add_u32 v8, s73, v21
    v_lshlrev_b32 v9, 4, v3
    v_add_u32 v9, s73, v9
    s_lshl_b32 s72, {SW}, 9
    s_add_u32 s72, s72, {HF}
    v_lshl_add_u32 v10, v21, 1, s72
    v_lshl_add_u32 v12, v22, 1, s72
    s_lshl_b32 s72, {SW}, 3
    s_add_u32 s72, s72, {STX}
    v_mov_b32 v13, s72
    v_add_u32 v18, {M1X}, v19
    v_mov_b32 v14, {STX}
    """)
    for mt in range(8): a(f"v_cmp_eq_u32 vcc, {mt}, v2\nv_cndmask_b32 v{232+mt}, 0, -1, vcc")
    a.gather([(160+8*aa+4*bq,"v7","s70" if bq==0 else "s71",aa*256) for aa in range(2) for bq in range(2)])
    a.stamp(9)
    for aa in range(2):
        for bq in range(2): a.mfma(40,24+4*aa,160+8*aa+4*bq)
    a(f"""
    v_cvt_pk_bf16_f32 v44, v40, v41
    v_cvt_pk_bf16_f32 v45, v42, v43
    s_mov_b32 exec_hi, 0
    ds_write_b64 v8, v[44:45]
    ds_write_b128 v10, v[40:43]
    s_mov_b64 exec, -1
    ds_read_b128 v[176:179], v9
    ds_read_b128 v[180:183], v9 offset:64
    ds_read_b128 v[184:187], v9 offset:128
    ds_read_b128 v[188:191], v9 offset:192
    ds_read_b128 v[56:59], v12
    v_add_f32 v36, v40, v41
    v_mul_f32 v37, v40, v40
    v_add_f32 v38, v42, v43
    v_fmac_f32 v37, v41, v41
    v_add_f32 v36, v36, v38
    v_fmac_f32 v37, v42, v42
    v_fmac_f32 v37, v43, v43
    """)
    a.inrow("v_add_f32",[36,37],ROWRED)
    a("s_waitcnt lgkmcnt(1)")
    for s in range(4):
        for ft in range(2): a.mfma(48+4*ft,F1+16*ft+4*s,176+4*s,"0" if s==0 else None)
    a.xrow("v_add_f32",[36,37],[38,39],steps=(16,))
    a(f"""
    s_mov_b64 exec, 1
    ds_write_b64 v13, v[36:37]
    s_mov_b64 exec, -1
    ds_write_b128 v23, v[48:51] offset:{M1X}
    ds_write_b128 v23, v[52:55] offset:{M1X+64}
    s_waitcnt lgkmcnt(0)
    s_barrier
    ds_read2_b32 v[40:41], v18 offset0:0 offset1:32
    ds_read2_b32 v[42:43], v18 offset0:64 offset1:96
    ds_read_b128 v[44:47], v14
    ds_read_b128 v[48:51], v14 offset:16
    """)
    a(f"""
    v_lshlrev_b32 v60, 16, v228
    v_and_b32 v61, 0xffff0000, v228
    v_lshlrev_b32 v62, 16, v229
    v_and_b32 v63, 0xffff0000, v229
    v_add_f32 v56, v56, v60
    v_add_f32 v57, v57, v61
    v_add_f32 v58, v58, v62
    v_add_f32 v59, v59, v63
    s_cmp_eq_u32 {FS}, 0
    s_cselect_b32 s72, -1, 0
    v_and_b32 v56, s72, v56
    v_and_b32 v57, s72, v57
    v_and_b32 v58, s72, v58
    v_and_b32 v59, s72, v59
    s_waitcnt lgkmcnt(0)
    v_add_f32 v40, v40, v41
    v_add_f32 v42, v42, v43
    v_add_f32 v40, v40, v42
    v_add_f32 v44, v44, v46
    v_add_f32 v48, v48, v50
    v_add_f32 v45, v45, v47
    v_add_f32 v49, v49, v51
    v_add_f32 v36, v44, v48
    v_add_f32 v37, v45, v49
    v_mul_f32 v36, {hex(f2u(1/512))}, v36
    v_mul_f32 v37, {hex(f2u(1/512))}, v37
    v_fma_f32 v37, -v36, v36, v37
    v_max_f32 v37, 0, v37
    v_add_f32 v37, {hex(f2u(1e-5))}, v37
    v_rsq_f32 v37, v37
    v_fma_f32 v40, -v36, v225, v40
    v_fma_f32 v40, v40, v37, v224
    """)
    c1=-2*0.7978845608028654*1.4426950408889634; c2=c1*0.044715
    a(f"""
    v_mul_f32 v41, v40, v40
    v_mov_b32 v42, {hex(f2u(c1))}
    v_fmac_f32 v42, {hex(f2u(c2))}, v41
    v_mul_f32 v41, v40, v42
    v_exp_f32 v41, v41
    v_add_f32 v41, 1.0, v41
    v_rcp_f32 v41, v41
    v_mul_f32 v40, v40, v41
    v_mov_b32_dpp v41, v40 quad_perm:[1,0,3,2] row_mask:0xf bank_mask:0xf
    v_cvt_pk_bf16_f32 v40, v40, v41
    """)
    for jd in range(4): a(f"v_mov_b32_dpp v{44+jd}, v40 row_newbcast:{2*jd} row_mask:0xf bank_mask:0xf")
    for mt in range(8):
        b=160+4*mt
        for jd in range(4): a(f"v_and_b32 v{b+jd}, v{44+jd}, v{232+mt}")
    for mt in range(8): a.mfma(56,F2+4*mt,160+4*mt)
    a(f"""
    v_lshlrev_b32 v5, 12, v2
    v_lshl_add_u32 v5, v3, 4, v5
    s_lshl_b32 s70, {SW}, 15
    s_lshl_b32 s71, {FS}, 6
    s_add_u32 s70, s70, s71
    s_add_u32 s70, s70, {YP}
    v_mov_b32 v50, 0
    v_mov_b32 v51, {TAG}
    s_mov_b32 s76, 0x00ff00ff
    s_mov_b32 s77, 0x00ff00ff
    v_cvt_pk_bf16_f32 v48, v56, v57
    v_cvt_pk_bf16_f32 v49, v58, v59
    s_mov_b64 exec, s[76:77]
    buffer_store_dwordx4 v[48:51], v5, {srd('ws')}, s70 offen {a.st}
    s_mov_b64 exec, -1
    """)
    a.stamp(10)
    a("s_branch L_fin")
    a("L_s_final:")
    a(f"""
    s_cmp_lt_u32 {RR}, 28
    s_cbranch_scc1 L_fin
    s_cmp_lg_u32 {SW}, 0
    s_cbranch_scc1 L_fin
    v_and_b32 v5, 1, v2
    v_lshlrev_b32 v5, 4, v5
    v_mov_b32 v6, 0x3f80
    v_lshlrev_b32 v5, v5, v6
    v_lshrrev_b32 v6, 1, v2
    v_cmp_eq_u32 vcc, 0, v6
    v_cndmask_b32 v24, 0, v5, vcc
    v_cmp_eq_u32 vcc, 1, v6
    v_cndmask_b32 v25, 0, v5, vcc
    v_mov_b32 v26, 0
    v_mov_b32 v27, 0
    v_mov_b32 v172, 0
    v_mov_b32 v173, 0
    v_mov_b32 v174, 0
    v_mov_b32 v175, 0
    v_lshlrev_b32 v7, 4, v1
    s_lshl_b32 s73, {XG}, 2
    s_add_u32 s73, s73, {RR}
    s_sub_u32 s73, s73, 28
    s_lshl_b32 s70, s73, 12
    s_add_u32 s70, s70, {YP}
    s_mov_b32 s76, -1
    s_mov_b32 s77, 0
    v_lshlrev_b32 v8, 3, v2
    s_lshl_b32 s71, s73, 5
    """)
    a.gather([(160+4*u,"v7","s70",u*1024) for u in range(4)], mask=[None,None,None,"s[76:77]"])
    a.stamp(9)
    for u in range(4): a.mfma(40,24,160+4*u,"0" if u==0 else None)
    a.inrow("v_add_f32",[40,41,42,43],["row_ror:4","row_ror:8"])
    a(f"""
    v_cvt_pk_bf16_f32 v48, v40, v41
    v_cvt_pk_bf16_f32 v49, v42, v43
    s_mov_b64 exec, 15
    buffer_store_dwordx2 v[48:49], v8, {srd('out')}, s71 offen
    s_mov_b64 exec, -1
    s_cmp_lg_u32 s73, 0
    s_cbranch_scc1 L_fin2
    v_mov_b32 v9, 0
    v_mov_b32 v10, {EP}
    s_mov_b64 exec, 1
    buffer_store_dword v10, v9, {srd('ws')}, 0 offen
    s_mov_b64 exec, -1
    L_fin2:
    """)
    a.stamp(10)
    a("L_fin:")
    if stamps:
        a(f"""
        s_waitcnt lgkmcnt(0)
        s_lshl_b32 s70, s2, 3
        s_add_u32 s70, s70, s3
        s_lshl_b32 s70, s70, 7
        s_add_u32 s70, s70, {STAMPS}
        v_mov_b32 v9, 0
        s_mov_b64 exec, 1
        """)
        for j in range(11):
            a(f"v_mov_b32 v4, s{80+2*j}\nv_mov_b32 v5, s{81+2*j}\nbuffer_store_dwordx2 v[4:5], v9, {srd('ws')}, s70 offen offset:{8*j}\ns_nop 1")
        a("s_mov_b64 exec, -1")
    a("L_end:")
    text,n=hz.process(a.text())
    return wrap(text,grid=256,block=512,lds=LDS_TOTAL,vgpr=256,sgpr=102)

if __name__=="__main__":
    open("k1.s","w").write(build(stamps=False))
    open("k1_st.s","w").write(build(stamps=True))
    print("ok")
```

```python
import sys, struct
from asmlib import *
import hz

def f2u(f): return struct.unpack("<I",struct.pack("<f",f))[0]

EPOCH=0
QP=0x10000; QA=0x30000; CP=0x40000; OP=0x60000; YP=0x70000; STAMPS=0x100000; PART=0x1000000
QIMG=131072; MISC=147456
MX=MISC; PX=MISC+1024
TX=24576
S3V=TX
S3S=TX+512
S4X=TX+640
CSX=TX+1024
M1X=TX+1536
STX=TX+2048
HV=TX+2304
HF=TX+3584
LDS_TOTAL=MISC+6144
NMLP=56

SRD=dict(x=4,ckv=8,wq=12,wuk=16,wuv=20,wo=24,w1=28,b1=32,w2=36,b2=40,out=44,ws=48)
KOFF=dict(x=0,ckv=8,wq=16,wuk=24,wuv=32,wo=40,w1=56,b1=64,w2=72,b2=80,out=88,ws=104)
SIZE=dict(x=1024,ckv=1<<24,wq=1<<22,wuk=1<<22,wuv=1<<22,wo=1<<22,w1=512*1792*2,b1=3584,w2=1792*1024,b2=1024,out=1024,ws=1<<28)
def srd(n): return f"s[{SRD[n]}:{SRD[n]+3}]"
TAG="s56"; EP="s57"; XG="s58"; RR="s59"; HH="s60"; JJ="s61"; KG="s62"; HG="s63"; SW="s64"; FS="s65"; TMO="s66"
def vr(b,n=4): return f"v[{b}:{b+n-1}]"

class G(A):
    def __init__(self, stamps=False, ldflag="nt", st="sc1", ld="sc1"):
        super().__init__(); self.stamps=stamps; self.ldflag=ldflag; self.st=st; self.ld=ld
        self.lq_issued=0; self.lq_done=0
    def stamp(self,k):
        if self.stamps: self(f"s_memrealtime s[{80+2*k}:{81+2*k}]")
    def lreset(self): self.lq_issued=0; self.lq_done=0
    def lds(self,instr):
        if self.lq_issued-self.lq_done>=15:
            self("s_waitcnt lgkmcnt(10)"); self.lq_done=self.lq_issued-10
        self(instr); self.lq_issued+=1; return self.lq_issued
    def lwait(self,t):
        if t<=self.lq_done: return
        n=self.lq_issued-t
        self(f"s_waitcnt lgkmcnt({n})"); self.lq_done=t
    def lwait_all(self):
        self("s_waitcnt lgkmcnt(0)"); self.lq_done=self.lq_issued
    def gfun(self,dst,src,tmp):
        self(f"v_and_b32 v{tmp}, 7, v{src}\nv_lshrrev_b32 v{dst}, 3, v{src}\nv_lshl_or_b32 v{dst}, v{tmp}, 1, v{dst}")
    def xrow(self,op,regs,tmps,steps=(16,32)):
        for st in steps:
            for r,t in zip(regs,tmps): self(f"v_mov_b32 v{t}, v{r}")
            for r,t in zip(regs,tmps): self(f"v_permlane{st}_swap_b32 v{r}, v{t}")
            for r,t in zip(regs,tmps): self(f"{op} v{r}, v{r}, v{t}")
    def inrow(self,op,regs,ctrls):
        for c in ctrls:
            for r in regs: self(f"{op}_dpp v{r}, v{r}, v{r} {c} row_mask:0xf bank_mask:0xf")
    def gather(self, loads, mask=None, sleep=0):
        masks = mask if isinstance(mask,list) else [mask]*len(loads)
        def ld(d,va,so,io):
            self(f"buffer_load_dwordx4 {vr(d)}, {va}, {srd('ws')}, {so} offen offset:{io} {self.ld}")
        cur=None
        def setexec(m):
            nonlocal cur
            m = m or "-1"
            if m!=cur: self(f"s_mov_b64 exec, {m}"); cur=m
        cur="-1"
        for (d,va,so,io),m in zip(loads,masks):
            setexec(m); ld(d,va,so,io)
        L=self.label("poll");
        self(f"s_mov_b32 {TMO}, 0")
        self(f"{L}:")
        cur=None
        self("s_waitcnt vmcnt(0)")
        self("s_mov_b32 s72, 0")
        for (d,va,so,io),m in zip(loads,masks):
            ok=self.label("ok")
            setexec(m)
            self(f"v_cmp_ne_u32 vcc, {TAG}, v{d+3}")
            self(f"s_cbranch_vccz {ok}")
            self("s_mov_b32 s72, 1")
            self("s_mov_b64 exec, vcc")
            ld(d,va,so,io)
            self(f"s_mov_b64 exec, {m or '-1'}")
            self(f"{ok}:")
        self("s_mov_b64 exec, -1")
        self(f"s_add_u32 {TMO}, {TMO}, 1")
        self(f"s_cmp_gt_u32 {TMO}, 20000")
        self("s_cbranch_scc1 L_end")
        self("s_cmp_lg_u32 s72, 0")
        self(f"s_cbranch_scc1 {L}")
    def mfma(self,d,a,b,c=None):
        cs = vr(d) if c is None else c
        self(f"v_mfma_f32_16x16x32_bf16 {vr(d)}, {vr(a)}, {vr(b)}, {cs}")
    def selectors(self, base, bp_lo8, bp_hi8, nrows, t0,t1,t2):
        self(f"v_mov_b32 v{t0}, {hex(bp_lo8)}")
        self(f"v_mov_b32 v{t1}, {hex(bp_hi8 if bp_hi8 is not None else 0x0c0c)}")
        self(f"v_cmp_gt_u32 vcc, 8, v2")
        self(f"v_cndmask_b32 v{t0}, v{t1}, v{t0}, vcc")
        if nrows<8:
            self(f"v_and_b32 v{t1}, 7, v2")
            self(f"v_mov_b32 v{t2}, 0x0c0c")
            self(f"v_cmp_gt_u32 vcc, {nrows}, v{t1}")
            self(f"v_cndmask_b32 v{t0}, v{t2}, v{t0}, vcc")
        self(f"v_or_b32 v{t1}, 0x0c0c0000, v{t0}")
        self(f"v_lshlrev_b32 v{t0}, 16, v{t0}")
        self(f"v_or_b32 v{t0}, 0x0c0c, v{t0}")
        self(f"v_and_b32 v{t2}, 1, v2")
        self(f"v_cmp_eq_u32 vcc, 0, v{t2}")
        self(f"v_cndmask_b32 v{t0}, v{t0}, v{t1}, vcc")
        self(f"v_bfe_u32 v{t2}, v2, 1, 2")
        self(f"v_mov_b32 v{t1}, 0x0c0c0c0c")
        for jd in range(4):
            self(f"v_cmp_eq_u32 vcc, {jd}, v{t2}")
            self(f"v_cndmask_b32 v{base+jd}, v{t1}, v{t0}, vcc")

def build(stamps=False, **kw):
    a=G(stamps=stamps, **kw)
    NT=a.ldflag
    a.stamp(0)
    a("s_cmp_ge_u32 s2, 256\ns_cbranch_scc1 L_end")
    for n in SRD: a(f"s_load_dwordx2 s[{SRD[n]}:{SRD[n]+1}], s[0:1], {KOFF[n]}")
    for n in SRD: a(f"s_mov_b32 s{SRD[n]+2}, {hex(SIZE[n])}\ns_mov_b32 s{SRD[n]+3}, 0x20000")
    a(f"""
    v_readfirstlane_b32 s3, v0
    v_and_b32 v1, 63, v0
    v_and_b32 v2, 15, v0
    v_bfe_u32 v3, v0, 4, 2
    s_lshr_b32 s3, s3, 6
    s_and_b32 {XG}, s2, 7
    s_lshr_b32 {RR}, s2, 3
    s_lshr_b32 s70, {RR}, 3
    s_lshl_b32 {HH}, {XG}, 2
    s_add_u32 {HH}, {HH}, s70
    s_and_b32 {JJ}, {RR}, 7
    s_lshr_b32 s70, {RR}, 1
    s_lshl_b32 {KG}, {XG}, 4
    s_add_u32 {KG}, {KG}, s70
    s_and_b32 {HG}, {RR}, 1
    s_sub_u32 {SW}, s3, 4
    s_mul_i32 {FS}, {XG}, 7
    s_add_u32 {FS}, {FS}, {RR}
    s_cmp_ge_u32 s3, 4
    s_cbranch_scc1 L_srole
    """)
    for z in range(4):
        a(f"v_add_u32 v36, {4*z}, v3")
        a.gfun(37,36,38)
        a(f"v_xor_b32 v37, v2, v37\nv_lshlrev_b32 v37, 4, v37\nv_lshl_add_u32 v{4+z}, v3, 10, v37")
    a(f"""
    s_lshl_b32 s70, {KG}, 17
    s_lshl_b32 s71, s3, 15
    s_add_u32 s70, s70, s71
    s_lshl_b32 s71, s3, 13
    s_waitcnt lgkmcnt(0)
    s_load_dword {EP}, s[{SRD['ws']}:{SRD['ws']+1}], {EPOCH}
    """)
    for cr in range(4):
        for kb in range(8):
            a(f"s_add_u32 s72, s70, {kb*4096+cr*256}")
            a(f"s_add_u32 m0, s71, {cr*32768+kb*1024}")
            a(f"buffer_load_dwordx4 v{4+(kb&3)}, {srd('ckv')}, s72 offen {NT} lds")
    a.stamp(1)
    a.gfun(36,2,37)
    a(f"s_lshl_b32 s72, s3, 13")
    for ks in range(4):
        a(f"""
        v_lshl_add_u32 v37, v3, 2, {ks}
        v_xor_b32 v37, v37, v36
        v_lshlrev_b32 v37, 4, v37
        v_lshl_add_u32 v38, v2, 8, v37
        v_add_u32 v{8+ks}, s72, v38
        v_add_u32 v{12+ks}, 0x10000, v{8+ks}
        v_lshl_add_u32 v38, v2, 10, v37
        v_add_u32 v{16+ks}, {QIMG}, v38
        """)
    a("v_lshrrev_b32 v36, 2, v1")
    a.gfun(37,36,38)
    a(f"""
    v_bfe_u32 v38, v1, 1, 1
    v_and_b32 v39, 1, v1
    v_lshlrev_b32 v39, 3, v39
    v_lshl_add_u32 v39, v36, 8, v39
    s_lshl_b32 s72, s3, 15
    v_add_u32 v39, s72, v39
    """)
    for ct in range(8):
        a(f"""
        v_add_u32 v36, {2*ct}, v38
        v_xor_b32 v36, v36, v37
        v_lshl_add_u32 v{20+ct}, v36, 4, v39
        """)
    a(f"""
    v_lshlrev_b32 v29, 4, v1
    v_add_u32 v29, {PX}, v29
    s_lshl_b32 s72, s3, 10
    v_add_u32 v28, s72, v29
    v_lshlrev_b32 v31, 4, v2
    v_add_u32 v31, {MX}, v31
    s_lshl_b32 s72, s3, 2
    v_add_u32 v30, s72, v31
    v_mov_b32 v32, 0x3f803f80
    v_mov_b32 v33, 0x3f803f80
    v_mov_b32 v34, 0x3f803f80
    v_mov_b32 v35, 0x3f803f80
    """)
    a(f"""
    s_lshl_b32 s72, {HG}, 22
    s_lshl_b32 s73, s3, 16
    s_add_u32 s72, s72, s73
    s_lshl_b32 s73, {KG}, 8
    s_add_u32 s72, s72, s73
    s_add_u32 s74, s72, {PART}
    s_add_u32 s75, s74, 0x8000
    v_lshlrev_b32 v124, 18, v2
    v_lshl_add_u32 v124, v3, 4, v124
    s_waitcnt lgkmcnt(0)
    """)
    tagcalc=f"""
    s_add_u32 {EP}, {EP}, 1
    s_and_b32 {TAG}, {EP}, 0x3fff
    s_lshl_b32 s72, {EP}, 2
    s_and_b32 s72, s72, 0x3fff0000
    s_or_b32 {TAG}, {TAG}, s72
    """
    a(tagcalc)
    for g in range(6): a(f"v_mov_b32 v{103+4*g}, {TAG}")
    a("s_barrier")
    a.stamp(2)
    a.lreset()
    QF=128; AB=192
    qt={}
    for cr in range(4):
        for ks in range(4):
            qt[cr,ks]=a.lds(f"ds_read_b128 {vr(QF+16*cr+4*ks)}, v{16+ks} offset:{cr*256}")
    at={}
    def areads(cr):
        a(f"s_waitcnt vmcnt({24-8*cr})")
        for ks in range(4):
            for t in range(2):
                base=(8 if cr<2 else 12)+ks
                at[cr,t,ks]=a.lds(f"ds_read_b128 {vr(AB+32*(cr&1)+16*t+4*ks)}, v{base} offset:{(cr&1)*32768+t*4096}")
    areads(0)
    for cr in range(4):
        if cr<3:
            if cr>=1: pass
            areads(cr+1) if cr==0 else None
        for ks in range(4):
            for t in range(2):
                a.lwait(at[cr,t,ks])
                a.mfma(40+4*t, AB+32*(cr&1)+16*t+4*ks, QF+16*cr+4*ks, "0" if (cr==0 and ks==0) else None)
        if cr+2<4: areads(cr+2)
    a.stamp(3)
    a("""
    v_max3_f32 v36, v40, v41, v42
    v_max3_f32 v37, v43, v44, v45
    v_max3_f32 v36, v36, v46, v47
    v_max_f32 v36, v36, v37
    """)
    a.xrow("v_max_f32",[36],[37])
    a("ds_write_b32 v30, v36\ns_waitcnt lgkmcnt(0)\ns_barrier")
    a.lreset()
    tm=a.lds("ds_read_b128 v[36:39], v31")
    PVF=128
    trl=[(ct,w2,h2) for ct in range(8) for w2 in range(4) for h2 in range(2)]
    tt={}
    def tr(k):
        ct,w2,h2=trl[k]
        tt[ct,w2,h2]=a.lds(f"ds_read_b64_tr_b16 {vr(PVF+16*ct+4*w2+2*h2,2)}, v{20+ct} offset:{w2*8192+h2*4096}")
    k=0
    for _ in range(12): tr(k); k+=1
    a.lwait(tm)
    a("""
    v_max3_f32 v36, v36, v37, v38
    v_max_f32 v36, v36, v39
    v_ceil_f32 v36, v36
    """)
    for i in range(8): a(f"v_sub_f32 v{40+i}, v{40+i}, v36")
    for i in range(8): a(f"v_exp_f32 v{40+i}, v{40+i}")
    for _ in range(8): tr(k); k+=1
    for i in range(4): a(f"v_cvt_pk_bf16_f32 v{48+i}, v{40+2*i}, v{41+2*i}")
    a.lds("ds_write_b128 v28, v[48:51]")
    a.lwait_all()
    a("s_barrier")
    pt=[a.lds(f"ds_read_b128 {vr(48+4*w2)}, v29 offset:{w2*1024}") for w2 in range(4)]
    for _ in range(8): tr(k); k+=1
    for w2 in range(4):
        a.lwait(pt[w2])
        a.mfma(64,32,48+4*w2,"0" if w2==0 else None)
    def epi(half):
        gb=100+12*half
        P=[gb+0,gb+1,gb+2,gb+4,gb+5,gb+6,gb+8,gb+9]
        for c4 in range(4):
            o=68+4*(4*half+c4)
            a(f"v_cvt_pk_bf16_f32 v{P[2*c4]}, v{o}, v{o+1}")
            a(f"v_cvt_pk_bf16_f32 v{P[2*c4+1]}, v{o+2}, v{o+3}")
        a(f"v_mov_b32 v{gb+10}, v39")
        for g in range(3):
            a(f"buffer_store_dwordx4 {vr(gb+4*g)}, v124, {srd('ws')}, s{74+half} offen offset:{g*64} {a.st}")
    for ct in range(8):
        for w2 in range(4):
            a.lwait(tt[ct,w2,1])
            a.mfma(68+4*ct, PVF+16*ct+4*w2, 48+4*w2, "0" if w2==0 else None)
            for _ in range(2):
                if k<64: tr(k); k+=1
        if ct==1:
            a("""
            v_cvt_pk_bf16_f32 v37, v64, v64
            v_lshlrev_b32 v37, 16, v37
            v_sub_f32 v37, v64, v37
            v_cvt_pk_bf16_f32 v37, v64, v37
            v_mov_b32 v39, 0
            v_cmp_eq_u32 vcc, 1, v3
            v_cndmask_b32 v39, v39, v37, vcc
            v_cmp_eq_u32 vcc, 0, v3
            v_cndmask_b32 v39, v39, v36, vcc
            """)
        if ct==5: epi(0)
    a("s_barrier")
    epi(1)
    a.stamp(4)
    a("s_branch L_fin")

    a("L_srole:")
    a("s_setprio 3")
    a(f"s_cmp_lg_u32 {SW}, 0\ns_cbranch_scc1 L_s_noS1")
    WQ=64; WUK=128; AU=192
    a(f"""
    v_lshlrev_b32 v4, 4, v1
    v_lshlrev_b32 v5, 5, v3
    v_lshlrev_b32 v6, 17, v3
    v_lshl_add_u32 v6, v2, 4, v6
    v_lshlrev_b32 v7, 15, v2
    v_lshl_add_u32 v7, v3, 4, v7
    s_lshl_b32 s70, {JJ}, 7
    s_lshl_b32 s71, {JJ}, 19
    s_lshl_b32 s72, {HH}, 8
    s_add_u32 s71, s71, s72
    s_waitcnt lgkmcnt(0)
    s_load_dword {EP}, s[{SRD['ws']}:{SRD['ws']+1}], {EPOCH}
    buffer_load_dwordx4 v[8:11], v5, {srd('x')}, s70 offen
    buffer_load_dwordx4 v[12:15], v5, {srd('x')}, s70 offen offset:16
    buffer_load_dwordx4 v[16:19], v4, {srd('x')}, 0 offen
    """)
    for u in range(16):
        a(f"s_add_u32 s72, s71, {u*8192}")
        a(f"buffer_load_dwordx4 {vr(WQ+4*u)}, v6, {srd('wq')}, s72 offen {NT}")
    for t in range(4):
        a(f"s_add_u32 s72, s71, {t*8192}")
        for s in range(4):
            a(f"buffer_load_dwordx4 {vr(WUK+16*t+4*s)}, v7, {srd('wuk')}, s72 offen offset:{s*64} {NT}")
    a.stamp(1)
    a.selectors(20,0x0100,0x0504,8,36,37,38)
    a.selectors(24,0x0302,0x0504,8,36,37,38)
    a("v_mov_b32 v28, 0x3f803f80")
    a("s_waitcnt vmcnt(33)")
    for u in range(16):
        for jd in range(4):
            a(f"v_perm_b32 v{AU+4*u+jd}, v28, v{8+u//2}, v{20+4*(u&1)+jd}")
    a("s_waitcnt vmcnt(32)")
    for i in range(4):
        a(f"v_lshlrev_b32 v{40+2*i}, 16, v{16+i}\nv_and_b32 v{41+2*i}, 0xffff0000, v{16+i}")
    a("v_add_f32 v36, v40, v41\nv_mul_f32 v37, v40, v40\nv_fmac_f32 v37, v41, v41")
    for i in range(2,8):
        a(f"v_add_f32 v36, v36, v{40+i}\nv_fmac_f32 v37, v{40+i}, v{40+i}")
    ROWRED=["quad_perm:[1,0,3,2]","quad_perm:[2,3,0,1]","row_half_mirror","row_mirror"]
    a.inrow("v_add_f32",[36,37],ROWRED)
    a.xrow("v_add_f32",[36,37],[38,39])
    a(f"""
    v_mul_f32 v36, {hex(f2u(1/512))}, v36
    v_mul_f32 v37, {hex(f2u(1/512))}, v37
    v_fma_f32 v37, -v36, v36, v37
    v_max_f32 v37, 0, v37
    v_add_f32 v37, {hex(f2u(1e-5))}, v37
    v_rsq_f32 v37, v37
    """)
    for u in range(16):
        a(f"s_waitcnt vmcnt({31-u})")
        a.mfma(40,AU+4*u,WQ+4*u,"0" if u==0 else None)
    a.stamp(2)
    a("s_waitcnt lgkmcnt(0)")
    a(tagcalc)
    a(f"""
    v_lshl_add_u32 v4, v2, 1, v3
    v_lshlrev_b32 v4, 4, v4
    s_lshl_b32 s70, {HH}, 12
    s_add_u32 s70, s70, {QP}
    s_lshl_b32 s71, {JJ}, 9
    s_add_u32 s71, s71, s70
    v_mov_b32 v50, 0
    v_mov_b32 v51, {TAG}
    """)
    for r in range(4): a(f"v_mov_b32 v{44+r}, v{40+r}")
    for r in range(4): a(f"v_permlane32_swap_b32 v{40+r}, v{44+r}")
    for r in range(4): a(f"v_fma_f32 v{40+r}, -v36, v{44+r}, v{40+r}")
    for r in range(4): a(f"v_mul_f32 v{40+r}, v37, v{40+r}")
    a(f"""
    v_cvt_pk_bf16_f32 v48, v40, v41
    v_cvt_pk_bf16_f32 v49, v42, v43
    s_mov_b32 exec_hi, 0
    buffer_store_dwordx4 v[48:51], v4, {srd('ws')}, s71 offen {a.st}
    s_mov_b64 exec, -1
    """)
    a(f"""
    v_lshrrev_b32 v5, 3, v2
    v_and_b32 v6, 7, v2
    v_lshl_add_u32 v7, v3, 1, v5
    v_lshlrev_b32 v7, 4, v7
    v_lshl_add_u32 v7, v6, 9, v7
    v_sub_u32 v30, 0, v5
    v_not_b32 v31, v30
    """)
    a.gather([(64+4*s,"v7","s70",s*128) for s in range(4)])
    a.stamp(3)
    def halfpos(d):
        a(f"v_and_b32 v{d+2}, v{d}, v30\nv_and_b32 v{d+3}, v{d+1}, v30\nv_and_b32 v{d}, v{d}, v31\nv_and_b32 v{d+1}, v{d+1}, v31")
    for s in range(4): halfpos(64+4*s)
    for s in range(4):
        for t in range(4):
            a.mfma(80+4*t,64+4*s,WUK+16*t+4*s,"0" if s==0 else None)
    for t in range(4):
        a(f"v_add_f32 v{80+4*t}, v{80+4*t}, v{81+4*t}\nv_add_f32 v{82+4*t}, v{82+4*t}, v{83+4*t}")
    for t in range(4):
        a(f"v_add_f32 v{40+t}, v{80+4*t}, v{82+4*t}")
    a.xrow("v_add_f32",[40,41,42,43],[44,45,46,47])
    SC=1.4426950408889634/(128**0.5)
    for t in range(4): a(f"v_mul_f32 v{40+t}, {hex(f2u(SC))}, v{40+t}")
    a(f"""
    v_cvt_pk_bf16_f32 v48, v40, v41
    v_cvt_pk_bf16_f32 v49, v42, v43
    v_lshlrev_b32 v4, 4, v2
    s_lshl_b32 s70, {HH}, 11
    s_lshl_b32 s71, {JJ}, 8
    s_add_u32 s70, s70, s71
    s_add_u32 s70, s70, {QA}
    s_mov_b64 exec, 0xffff
    buffer_store_dwordx4 v[48:51], v4, {srd('ws')}, s70 offen {a.st}
    s_mov_b64 exec, -1
    """)
    a.stamp(4)
    a("s_branch L_s_qg")
    a("L_s_noS1:")
    a(f"""
    s_waitcnt lgkmcnt(0)
    s_load_dword {EP}, s[{SRD['ws']}:{SRD['ws']+1}], {EPOCH}
    v_lshrrev_b32 v5, 3, v2
    v_sub_u32 v30, 0, v5
    v_not_b32 v31, v30
    s_waitcnt lgkmcnt(0)
    """)
    a(tagcalc)
    a("L_s_qg:")
    a(f"""
    v_lshlrev_b32 v4, 4, v1
    s_lshl_b32 s70, {HG}, 15
    s_lshl_b32 s71, {SW}, 13
    s_add_u32 s70, s70, s71
    s_add_u32 s70, s70, {QA}
    s_add_u32 s71, s70, 4096
    v_bfe_u32 v5, v1, 1, 4
    v_lshrrev_b32 v6, 5, v1
    v_and_b32 v7, 1, v1
    v_lshlrev_b32 v7, 3, v7
    v_lshl_add_u32 v7, v6, 8, v7
    """)
    for hh in range(4):
        a(f"""
        s_lshl_b32 s72, {SW}, 2
        s_add_u32 s72, s72, {hh}
        s_and_b32 s73, s72, 7
        s_lshl_b32 s73, s73, 1
        s_lshr_b32 s74, s72, 3
        s_or_b32 s73, s73, s74
        s_lshl_b32 s72, s72, 10
        s_add_u32 s72, s72, {QIMG}
        v_xor_b32 v6, s73, v5
        v_lshl_add_u32 v6, v6, 4, v7
        v_add_u32 v{8+hh}, s72, v6
        """)
    a.gather([(64+4*u,"v4","s70" if u<4 else "s71",(u&3)*1024) for u in range(8)])
    for u in range(8):
        a(f"ds_write_b64 v{8+(u>>1)}, {vr(64+4*u,2)} offset:{(u&1)*512}")
    a("s_waitcnt lgkmcnt(0)\ns_barrier")
    a.stamp(5)
    RUV=128; RO=144; R1=160; R2=192
    a(f"""
    v_lshrrev_b32 v4, 2, v1
    v_and_b32 v5, 3, v1
    v_lshlrev_b32 v5, 4, v5
    v_lshl_add_u32 v6, v4, 13, v5
    s_lshl_b32 s70, {JJ}, 19
    s_lshl_b32 s71, {HH}, 8
    s_add_u32 s70, s70, s71
    s_lshl_b32 s71, {SW}, 6
    s_add_u32 s70, s70, s71
    """)
    for u in range(4):
        a(f"s_add_u32 s72, s70, {u*16*8192}")
        a(f"buffer_load_dwordx4 {vr(RUV+4*u)}, v6, {srd('wuv')}, s72 offen {NT}")
    a(f"""
    v_lshrrev_b32 v6, 1, v1
    v_and_b32 v7, 1, v1
    v_lshlrev_b32 v7, 4, v7
    v_lshl_add_u32 v6, v6, 10, v7
    s_lshl_b32 s70, {XG}, 2
    s_add_u32 s70, s70, {SW}
    s_lshl_b32 s70, s70, 17
    s_lshl_b32 s71, {RR}, 5
    s_add_u32 s70, s70, s71
    """)
    for u in range(4):
        a(f"s_add_u32 s72, s70, {u*32*1024}")
        a(f"buffer_load_dwordx4 {vr(RO+4*u)}, v6, {srd('wo')}, s72 offen {NT}")
    a(f"s_cmp_ge_u32 {RR}, 7\ns_cbranch_scc1 L_s_nomlpw")
    a(f"""
    v_mul_u32_u24 v6, 3584, v4
    v_add_u32 v6, v6, v5
    s_mul_i32 s70, {SW}, {128*3584}
    s_lshl_b32 s71, {FS}, 6
    s_add_u32 s70, s70, s71
    """)
    for u in range(8):
        a(f"s_add_u32 s72, s70, {u*16*3584}")
        a(f"buffer_load_dwordx4 {vr(R1+4*u)}, v6, {srd('w1')}, s72 offen {NT}")
    a(f"""
    v_lshlrev_b32 v6, 10, v3
    v_lshl_add_u32 v6, v2, 4, v6
    s_lshl_b32 s70, {FS}, 15
    s_lshl_b32 s71, {SW}, 8
    s_add_u32 s70, s70, s71
    """)
    for u in range(8):
        a(f"s_add_u32 s72, s70, {u*4096}")
        a(f"buffer_load_dwordx4 {vr(R2+4*u)}, v6, {srd('w2')}, s72 offen {NT}")
    a(f"""
    v_bfe_u32 v6, v2, 2, 1
    v_lshlrev_b32 v6, 4, v6
    v_lshl_add_u32 v6, v3, 2, v6
    v_and_b32 v7, 3, v2
    v_add_u32 v20, v6, v7
    v_lshlrev_b32 v6, 1, v20
    s_lshl_b32 s70, {FS}, 6
    buffer_load_ushort v224, v6, {srd('b1')}, s70 offen
    v_and_b32 v6, 1, v3
    v_lshlrev_b32 v6, 7, v6
    v_lshl_add_u32 v21, v2, 3, v6
    s_lshl_b32 s70, {SW}, 8
    buffer_load_dwordx2 v[226:227], v21, {srd('x')}, s70 offen
    v_and_b32 v6, 7, v2
    v_lshlrev_b32 v6, 5, v6
    v_lshl_add_u32 v22, v3, 3, v6
    buffer_load_dwordx2 v[228:229], v22, {srd('b2')}, s70 offen
    """)
    a("L_s_nomlpw:")
    a("s_barrier\ns_barrier\ns_barrier")
    a.stamp(6)
    FUV=64; FO=80; F1=96; F2=128
    a(f"""
    s_lshl_b32 s70, {SW}, 15
    v_lshlrev_b32 v4, 4, v1
    v_add_u32 v4, s70, v4
    v_bfe_u32 v5, v1, 2, 2
    v_and_b32 v6, 3, v1
    v_lshlrev_b32 v6, 3, v6
    v_add_u32 v6, s70, v6
    v_lshl_add_u32 v7, v3, 3, v5
    v_lshl_add_u32 v8, v7, 6, v6
    v_lshl_add_u32 v9, v7, 5, v6
    v_lshl_add_u32 v7, v3, 2, v5
    v_lshl_add_u32 v10, v7, 8, v6
    s_waitcnt vmcnt(0)
    """)
    a.lreset()
    for u in range(4): a.lds(f"ds_write_b128 v4, {vr(RUV+4*u)} offset:{u*1024}")
    for u in range(4): a.lds(f"ds_write_b128 v4, {vr(RO+4*u)} offset:{4096+u*1024}")
    for dt in range(2):
        for s in range(2):
            for h2 in range(2):
                a.lds(f"ds_read_b64_tr_b16 {vr(FUV+8*dt+4*s+2*h2,2)}, v8 offset:{(32*s+4*h2)*64+dt*32}")
    for s in range(4):
        for h2 in range(2):
            a.lds(f"ds_read_b64_tr_b16 {vr(FO+4*s+2*h2,2)}, v9 offset:{4096+(32*s+4*h2)*32}")
    a.lwait_all()
    a(f"s_cmp_ge_u32 {RR}, 7\ns_cbranch_scc1 L_s_nomlpf")
    for u in range(8): a.lds(f"ds_write_b128 v4, {vr(R1+4*u)} offset:{8192+u*1024}")
    for u in range(8): a.lds(f"ds_write_b128 v4, {vr(R2+4*u)} offset:{16384+u*1024}")
    for ft in range(2):
        for s in range(4):
            for h2 in range(2):
                a.lds(f"ds_read_b64_tr_b16 {vr(F1+16*ft+4*s+2*h2,2)}, v8 offset:{8192+(32*s+4*h2)*64+ft*32}")
    for mt in range(8):
        for h2 in range(2):
            a.lds(f"ds_read_b64_tr_b16 {vr(F2+4*mt+2*h2,2)}, v10 offset:{16384+16*h2*256+mt*32}")
    a.lwait_all()
    a("v_mov_b32 v32, 0x3f803f80\nv_mov_b32 v33, 0x3f803f80\nv_mov_b32 v34, 0x3f803f80\nv_mov_b32 v35, 0x3f803f80")
    for ft in range(2):
        for s in range(4): a.mfma(40+4*ft,F1+16*ft+4*s,32,"0" if s==0 else None)
    a(f"""
    s_lshl_b32 s70, {SW}, 7
    v_lshlrev_b32 v23, 4, v3
    v_add_u32 v23, s70, v23
    ds_write_b128 v23, v[40:43] offset:{CSX}
    ds_write_b128 v23, v[44:47] offset:{CSX+64}
    """)
    a("L_s_nomlpf:")
    a.selectors(24,0x0302,None,6,36,37,38)
    a(f"""
    v_lshlrev_b32 v4, 4, v1
    s_lshl_b32 s70, {HH}, 3
    s_add_u32 s70, s70, {JJ}
    s_lshl_b32 s70, s70, 15
    s_lshl_b32 s71, {SW}, 13
    s_add_u32 s70, s70, s71
    s_add_u32 s70, s70, {PART}
    s_add_u32 s71, s70, 4096
    s_mov_b32 s76, 0x0fff0fff
    s_mov_b32 s77, 0x0fff0fff
    v_cmp_ne_u32 vcc, 8, v2
    v_cndmask_b32 v11, 0, -1, vcc
    """)
    for i in range(32): a(f"v_mov_b32 v{160+i}, 0")
    a(f"""
    v_lshrrev_b32 v5, 2, v2
    v_and_b32 v6, 3, v2
    v_mul_u32_u24 v5, 3, v5
    v_lshl_add_u32 v5, v3, 1, v5
    s_lshl_b32 s72, {SW}, 7
    s_add_u32 s72, s72, {S3V}
    """)
    for k2 in range(2):
        a(f"""
        v_add_u32 v7, {k2}, v5
        v_lshrrev_b32 v8, 1, v7
        v_and_b32 v7, 1, v7
        v_lshlrev_b32 v8, 5, v8
        v_lshl_add_u32 v8, v6, 3, v8
        v_lshl_add_u32 v8, v7, 2, v8
        v_add_u32 v{12+k2}, s72, v8
        """)
    a.gather([(160+4*u,"v4","s70" if u<4 else "s71",(u&3)*1024) for u in range(8)], mask="s[76:77]")
    a.stamp(7)
    for u in range(8): a(f"v_mov_b32_dpp v{40+u}, v{162+4*u} row_newbcast:8 row_mask:0xf bank_mask:0xf")
    for u in range(8): a(f"v_and_b32 v{162+4*u}, v{162+4*u}, v11")
    a("""
    v_max3_f32 v36, v40, v41, v42
    v_max3_f32 v37, v43, v44, v45
    v_max3_f32 v36, v36, v46, v47
    v_max_f32 v36, v36, v37
    """)
    a.xrow("v_max_f32",[36],[37])
    for u in range(8): a(f"v_sub_f32 v{40+u}, v{40+u}, v36")
    for u in range(8): a(f"v_cvt_i32_f32 v{40+u}, v{40+u}")
    for u in range(8): a(f"v_ldexp_f32 v{40+u}, 1.0, v{40+u}")
    for u in range(8):
        for jd in range(3): a(f"v_perm_b32 v{192+4*u+jd}, v{40+u}, v{40+u}, v{24+jd}")
        a(f"v_mov_b32 v{195+4*u}, 0")
    for u in range(8): a.mfma(48,192+4*u,160+4*u,"0" if u==0 else None)
    a(f"""
    v_cvt_pk_bf16_f32 v52, v48, v49
    v_cvt_pk_bf16_f32 v53, v50, v51
    v_add_f32 v37, v48, v49
    s_lshl_b32 s72, {SW}, 3
    s_add_u32 s72, s72, {S3S}
    v_mov_b32 v5, s72
    s_mov_b64 exec, 0x00ff0fff
    ds_write_b32 v12, v52
    s_mov_b64 exec, 0x0fff
    ds_write_b32 v13, v53
    s_mov_b64 exec, 0x02000000
    ds_write_b64 v5, v[36:37]
    s_mov_b64 exec, -1
    s_waitcnt lgkmcnt(0)
    s_barrier
    """)
    if stamps=="lds":
        a(f"""
        v_lshlrev_b32 v5, 4, v1
        ds_read_b128 v[40:43], v5 offset:{TX}
        s_lshl_b32 s72, s2, 10
        s_add_u32 s72, s72, 0x200000
        s_waitcnt lgkmcnt(0)
        buffer_store_dwordx4 v[40:43], v5, {srd('ws')}, s72 offen
        s_nop 2
        """)
    a(f"""
    v_and_b32 v6, 3, v2
    v_lshlrev_b32 v5, 7, v6
    v_lshl_add_u32 v5, v3, 4, v5
    v_mov_b32 v7, {S3S}
    ds_read_b128 v[40:43], v5 offset:{S3V}
    ds_read_b128 v[44:47], v5 offset:{S3V+64}
    ds_read_b128 v[48:51], v7
    ds_read_b128 v[52:55], v7 offset:16
    v_lshlrev_b32 v6, 3, v6
    ds_read_b32 v56, v6 offset:{S3S}
    s_waitcnt lgkmcnt(3)
    """)
    for dt in range(2):
        for s in range(2): a.mfma(160+4*dt,FUV+8*dt+4*s,40+4*s,"0" if s==0 else None)
    a("""
    s_waitcnt lgkmcnt(0)
    v_max3_f32 v36, v48, v50, v52
    v_max_f32 v36, v36, v54
    v_sub_f32 v48, v48, v36
    v_sub_f32 v50, v50, v36
    v_sub_f32 v52, v52, v36
    v_sub_f32 v54, v54, v36
    v_sub_f32 v56, v56, v36
    v_exp_f32 v48, v48
    v_exp_f32 v50, v50
    v_exp_f32 v52, v52
    v_exp_f32 v54, v54
    v_exp_f32 v56, v56
    v_mul_f32 v37, v48, v49
    v_fmac_f32 v37, v50, v51
    v_fmac_f32 v37, v52, v53
    v_fmac_f32 v37, v54, v55
    v_rcp_f32 v37, v37
    v_mul_f32 v56, v56, v37
    """)
    for i in range(8): a(f"v_mul_f32 v{160+i}, v{160+i}, v56")
    a.inrow("v_add_f32",list(range(160,168)),["quad_perm:[1,0,3,2]","quad_perm:[2,3,0,1]"])
    a(f"""
    v_cvt_pk_bf16_f32 v48, v160, v161
    v_cvt_pk_bf16_f32 v49, v162, v163
    v_cvt_pk_bf16_f32 v52, v164, v165
    v_cvt_pk_bf16_f32 v53, v166, v167
    v_cmp_eq_u32 vcc, 1, v2
    v_cndmask_b32 v48, v48, v52, vcc
    v_cndmask_b32 v49, v49, v53, vcc
    v_mov_b32 v50, 0
    v_mov_b32 v51, {TAG}
    v_lshl_add_u32 v5, v2, 2, v3
    v_lshlrev_b32 v5, 4, v5
    s_lshl_b32 s70, {HH}, 3
    s_add_u32 s70, s70, {JJ}
    s_lshl_b32 s70, s70, 9
    s_lshl_b32 s71, {SW}, 7
    s_add_u32 s70, s70, s71
    s_add_u32 s70, s70, {CP}
    s_mov_b32 s76, 0x00030003
    s_mov_b32 s77, 0x00030003
    s_mov_b64 exec, s[76:77]
    buffer_store_dwordx4 v[48:51], v5, {srd('ws')}, s70 offen {a.st}
    s_mov_b64 exec, -1
    """)
    a(f"s_cmp_ge_u32 {RR}, 7\ns_cbranch_scc1 L_s_nocs")
    a(f"""
    v_lshlrev_b32 v19, 2, v20
    ds_read2_b32 v[40:41], v19 offset0:{0} offset1:{32}
    """.replace("v19 offset0","v18 offset0").replace("ds_read2_b32",f"v_add_u32 v18, {CSX}, v19\n    ds_read2_b32"))
    a(f"""
    ds_read2_b32 v[42:43], v18 offset0:64 offset1:96
    s_waitcnt lgkmcnt(0)
    v_add_f32 v40, v40, v41
    v_add_f32 v42, v42, v43
    v_add_f32 v225, v40, v42
    v_lshlrev_b32 v224, 16, v224
    """)
    a("L_s_nocs:")
    a(f"""
    v_lshrrev_b32 v5, 3, v2
    v_and_b32 v6, 7, v2
    v_lshl_add_u32 v7, v3, 1, v5
    v_lshlrev_b32 v7, 4, v7
    v_lshl_add_u32 v7, v6, 9, v7
    s_lshl_b32 s70, {XG}, 2
    s_add_u32 s70, s70, {SW}
    s_lshl_b32 s70, s70, 12
    s_add_u32 s70, s70, {CP}
    s_lshl_b32 s71, {SW}, 6
    s_add_u32 s71, s71, {S4X}
    v_lshlrev_b32 v8, 2, v2
    v_add_u32 v8, s71, v8
    """)
    a.gather([(160+4*s,"v7","s70",s*128) for s in range(4)])
    a.stamp(8)
    for s in range(4): halfpos(160+4*s)
    for s in range(4): a.mfma(40,160+4*s,FO+4*s,"0" if s==0 else None)
    a("v_add_f32 v40, v40, v41\nv_add_f32 v42, v42, v43\nv_add_f32 v40, v40, v42")
    a.xrow("v_add_f32",[40],[41])
    a(f"""
    ds_write_b32 v8, v40
    s_waitcnt lgkmcnt(0)
    s_barrier
    s_cmp_lg_u32 {SW}, 0
    s_cbranch_scc1 L_s_s4done
    v_and_b32 v5, 3, v1
    v_lshlrev_b32 v5, 4, v5
    ds_read_b128 v[40:43], v5 offset:{S4X}
    ds_read_b128 v[44:47], v5 offset:{S4X+64}
    ds_read_b128 v[48:51], v5 offset:{S4X+128}
    ds_read_b128 v[52:55], v5 offset:{S4X+192}
    s_lshl_b32 s70, {XG}, 11
    s_lshl_b32 s71, {RR}, 6
    s_add_u32 s70, s70, s71
    s_add_u32 s70, s70, {OP}
    s_waitcnt lgkmcnt(0)
    """)
    for r in range(4): a(f"v_add_f32 v{40+r}, v{40+r}, v{44+r}\nv_add_f32 v{48+r}, v{48+r}, v{52+r}")
    for r in range(4): a(f"v_add_f32 v{40+r}, v{40+r}, v{48+r}")
    a(f"""
    v_cvt_pk_bf16_f32 v48, v40, v41
    v_cvt_pk_bf16_f32 v49, v42, v43
    v_mov_b32 v50, 0
    v_mov_b32 v51, {TAG}
    s_mov_b64 exec, 15
    buffer_store_dwordx4 v[48:51], v5, {srd('ws')}, s70 offen {a.st}
    s_mov_b64 exec, -1
    L_s_s4done:
    s_cmp_ge_u32 {RR}, 7
    s_cbranch_scc1 L_s_final
    """)
    a(f"""
    v_and_b32 v5, 1, v2
    v_lshlrev_b32 v5, 4, v5
    v_mov_b32 v6, 0x3f80
    v_lshlrev_b32 v5, v5, v6
    v_lshrrev_b32 v6, 1, v2
    """)
    for aa in range(2):
        for jd in range(2):
            a(f"v_cmp_eq_u32 vcc, {2*aa+jd}, v6\nv_cndmask_b32 v{24+4*aa+jd}, 0, v5, vcc")
        a(f"v_mov_b32 v{26+4*aa}, 0\nv_mov_b32 v{27+4*aa}, 0")
    a(f"""
    v_cmp_gt_u32 vcc, 2, v3
    v_cndmask_b32 v226, 0, v226, vcc
    v_cndmask_b32 v227, 0, v227, vcc
    v_lshlrev_b32 v40, 16, v226
    v_and_b32 v41, 0xffff0000, v226
    v_lshlrev_b32 v42, 16, v227
    v_and_b32 v43, 0xffff0000, v227
    v_lshlrev_b32 v7, 11, v3
    v_lshl_add_u32 v7, v2, 4, v7
    s_lshl_b32 s70, {SW}, 9
    s_add_u32 s70, s70, {OP}
    s_add_u32 s71, s70, 8192
    s_lshl_b32 s72, {SW}, 8
    s_add_u32 s73, s72, {HV}
    v_add_u32 v8, s73, v21
    v_lshlrev_b32 v9, 4, v3
    v_add_u32 v9, s73, v9
    s_lshl_b32 s72, {SW}, 9
    s_add_u32 s72, s72, {HF}
    v_lshl_add_u32 v10, v21, 1, s72
    v_lshl_add_u32 v12, v22, 1, s72
    s_lshl_b32 s72, {SW}, 3
    s_add_u32 s72, s72, {STX}
    v_mov_b32 v13, s72
    v_add_u32 v18, {M1X}, v19
    v_mov_b32 v14, {STX}
    """)
    for mt in range(8): a(f"v_cmp_eq_u32 vcc, {mt}, v2\nv_cndmask_b32 v{232+mt}, 0, -1, vcc")
    a.gather([(160+8*aa+4*bq,"v7","s70" if bq==0 else "s71",aa*256) for aa in range(2) for bq in range(2)])
    a.stamp(9)
    for aa in range(2):
        for bq in range(2): a.mfma(40,24+4*aa,160+8*aa+4*bq)
    a(f"""
    v_cvt_pk_bf16_f32 v44, v40, v41
    v_cvt_pk_bf16_f32 v45, v42, v43
    s_mov_b32 exec_hi, 0
    ds_write_b64 v8, v[44:45]
    ds_write_b128 v10, v[40:43]
    s_mov_b64 exec, -1
    ds_read_b128 v[176:179], v9
    ds_read_b128 v[180:183], v9 offset:64
    ds_read_b128 v[184:187], v9 offset:128
    ds_read_b128 v[188:191], v9 offset:192
    ds_read_b128 v[56:59], v12
    v_add_f32 v36, v40, v41
    v_mul_f32 v37, v40, v40
    v_add_f32 v38, v42, v43
    v_fmac_f32 v37, v41, v41
    v_add_f32 v36, v36, v38
    v_fmac_f32 v37, v42, v42
    v_fmac_f32 v37, v43, v43
    """)
    a.inrow("v_add_f32",[36,37],ROWRED)
    a("s_waitcnt lgkmcnt(1)")
    for s in range(4):
        for ft in range(2): a.mfma(48+4*ft,F1+16*ft+4*s,176+4*s,"0" if s==0 else None)
    a.xrow("v_add_f32",[36,37],[38,39],steps=(16,))
    a(f"""
    s_mov_b64 exec, 1
    ds_write_b64 v13, v[36:37]
    s_mov_b64 exec, -1
    ds_write_b128 v23, v[48:51] offset:{M1X}
    ds_write_b128 v23, v[52:55] offset:{M1X+64}
    s_waitcnt lgkmcnt(0)
    s_barrier
    ds_read2_b32 v[40:41], v18 offset0:0 offset1:32
    ds_read2_b32 v[42:43], v18 offset0:64 offset1:96
    ds_read_b128 v[44:47], v14
    ds_read_b128 v[48:51], v14 offset:16
    """)
    a(f"""
    v_lshlrev_b32 v60, 16, v228
    v_and_b32 v61, 0xffff0000, v228
    v_lshlrev_b32 v62, 16, v229
    v_and_b32 v63, 0xffff0000, v229
    v_add_f32 v56, v56, v60
    v_add_f32 v57, v57, v61
    v_add_f32 v58, v58, v62
    v_add_f32 v59, v59, v63
    s_cmp_eq_u32 {FS}, 0
    s_cselect_b32 s72, -1, 0
    v_and_b32 v56, s72, v56
    v_and_b32 v57, s72, v57
    v_and_b32 v58, s72, v58
    v_and_b32 v59, s72, v59
    s_waitcnt lgkmcnt(0)
    v_add_f32 v40, v40, v41
    v_add_f32 v42, v42, v43
    v_add_f32 v40, v40, v42
    v_add_f32 v44, v44, v46
    v_add_f32 v48, v48, v50
    v_add_f32 v45, v45, v47
    v_add_f32 v49, v49, v51
    v_add_f32 v36, v44, v48
    v_add_f32 v37, v45, v49
    v_mul_f32 v36, {hex(f2u(1/512))}, v36
    v_mul_f32 v37, {hex(f2u(1/512))}, v37
    v_fma_f32 v37, -v36, v36, v37
    v_max_f32 v37, 0, v37
    v_add_f32 v37, {hex(f2u(1e-5))}, v37
    v_rsq_f32 v37, v37
    v_fma_f32 v40, -v36, v225, v40
    v_fma_f32 v40, v40, v37, v224
    """)
    c1=-2*0.7978845608028654*1.4426950408889634; c2=c1*0.044715
    a(f"""
    v_mul_f32 v41, v40, v40
    v_mov_b32 v42, {hex(f2u(c1))}
    v_fmac_f32 v42, {hex(f2u(c2))}, v41
    v_mul_f32 v41, v40, v42
    v_exp_f32 v41, v41
    v_add_f32 v41, 1.0, v41
    v_rcp_f32 v41, v41
    v_mul_f32 v40, v40, v41
    v_mov_b32_dpp v41, v40 quad_perm:[1,0,3,2] row_mask:0xf bank_mask:0xf
    v_cvt_pk_bf16_f32 v40, v40, v41
    """)
    for jd in range(4): a(f"v_mov_b32_dpp v{44+jd}, v40 row_newbcast:{2*jd} row_mask:0xf bank_mask:0xf")
    for mt in range(8):
        b=160+4*mt
        for jd in range(4): a(f"v_and_b32 v{b+jd}, v{44+jd}, v{232+mt}")
    for mt in range(8): a.mfma(56,F2+4*mt,160+4*mt)
    a(f"""
    v_lshlrev_b32 v5, 12, v2
    v_lshl_add_u32 v5, v3, 4, v5
    s_lshl_b32 s70, {SW}, 15
    s_lshl_b32 s71, {FS}, 6
    s_add_u32 s70, s70, s71
    s_add_u32 s70, s70, {YP}
    v_mov_b32 v50, 0
    v_mov_b32 v51, {TAG}
    s_mov_b32 s76, 0x00ff00ff
    s_mov_b32 s77, 0x00ff00ff
    v_cvt_pk_bf16_f32 v48, v56, v57
    v_cvt_pk_bf16_f32 v49, v58, v59
    s_mov_b64 exec, s[76:77]
    buffer_store_dwordx4 v[48:51], v5, {srd('ws')}, s70 offen {a.st}
    s_mov_b64 exec, -1
    """)
    a.stamp(10)
    a("s_branch L_fin")
    a("L_s_final:")
    a(f"""
    s_cmp_lt_u32 {RR}, 28
    s_cbranch_scc1 L_fin
    s_cmp_lg_u32 {SW}, 0
    s_cbranch_scc1 L_fin
    v_and_b32 v5, 1, v2
    v_lshlrev_b32 v5, 4, v5
    v_mov_b32 v6, 0x3f80
    v_lshlrev_b32 v5, v5, v6
    v_lshrrev_b32 v6, 1, v2
    v_cmp_eq_u32 vcc, 0, v6
    v_cndmask_b32 v24, 0, v5, vcc
    v_cmp_eq_u32 vcc, 1, v6
    v_cndmask_b32 v25, 0, v5, vcc
    v_mov_b32 v26, 0
    v_mov_b32 v27, 0
    v_mov_b32 v172, 0
    v_mov_b32 v173, 0
    v_mov_b32 v174, 0
    v_mov_b32 v175, 0
    v_lshlrev_b32 v7, 4, v1
    s_lshl_b32 s73, {XG}, 2
    s_add_u32 s73, s73, {RR}
    s_sub_u32 s73, s73, 28
    s_lshl_b32 s70, s73, 12
    s_add_u32 s70, s70, {YP}
    s_mov_b32 s76, -1
    s_mov_b32 s77, 0
    v_lshlrev_b32 v8, 3, v2
    s_lshl_b32 s71, s73, 5
    """)
    a.gather([(160+4*u,"v7","s70",u*1024) for u in range(4)], mask=[None,None,None,"s[76:77]"])
    a.stamp(9)
    for u in range(4): a.mfma(40,24,160+4*u,"0" if u==0 else None)
    a.inrow("v_add_f32",[40,41,42,43],["row_ror:4","row_ror:8"])
    a(f"""
    v_cvt_pk_bf16_f32 v48, v40, v41
    v_cvt_pk_bf16_f32 v49, v42, v43
    s_mov_b64 exec, 15
    buffer_store_dwordx2 v[48:49], v8, {srd('out')}, s71 offen
    s_mov_b64 exec, -1
    s_cmp_lg_u32 s73, 0
    s_cbranch_scc1 L_fin2
    v_mov_b32 v9, 0
    v_mov_b32 v10, {EP}
    s_mov_b64 exec, 1
    buffer_store_dword v10, v9, {srd('ws')}, 0 offen
    s_mov_b64 exec, -1
    L_fin2:
    """)
    a.stamp(10)
    a("L_fin:")
    if stamps=="dbg":
        a(f"""
        s_waitcnt lgkmcnt(0)
        s_load_dwordx2 s[52:53], s[0:1], 96
        s_mov_b32 s54, 256
        s_mov_b32 s55, 0x20000
        s_and_b32 s70, s3, 3
        s_cmp_lg_u32 s70, 0
        s_cbranch_scc1 L_end
        s_and_b32 s70, {RR}, 3
        s_cmp_lg_u32 s70, 0
        s_cbranch_scc1 L_end
        s_waitcnt lgkmcnt(0)
        v_mov_b32 v9, 0
        s_mov_b64 exec, 1
        s_not_b32 s70, s80
        v_mov_b32 v4, s70
        buffer_atomic_umax v4, v9, s[52:55], 0 offen
        s_cmp_ge_u32 s3, 4
        s_cbranch_scc1 L_dbg_s
        """)
        for j in (1,2,3,4):
            a(f"v_mov_b32 v4, s{80+2*j}\nbuffer_atomic_umax v4, v9, s[52:55], 0 offen offset:{4*j}\ns_nop 1")
        a("s_branch L_end\nL_dbg_s:")
        for j in (1,2,3,4,6,7,8):
            a(f"v_mov_b32 v4, s{80+2*j}\nbuffer_atomic_umax v4, v9, s[52:55], 0 offen offset:{16+4*(j if j<5 else j-1)}\ns_nop 1")
        a(f"s_cmp_lt_u32 {RR}, 7\ns_cbranch_scc1 L_dbg_m\ns_cmp_lt_u32 {RR}, 28\ns_cbranch_scc1 L_end")
        for j in (9,10):
            a(f"v_mov_b32 v4, s{80+2*j}\nbuffer_atomic_umax v4, v9, s[52:55], 0 offen offset:{56+4*(j-9)}\ns_nop 1")
        a("s_branch L_end\nL_dbg_m:")
        for j in (9,10):
            a(f"v_mov_b32 v4, s{80+2*j}\nbuffer_atomic_umax v4, v9, s[52:55], 0 offen offset:{48+4*(j-9)}\ns_nop 1")
    elif stamps:
        a(f"""
        s_waitcnt lgkmcnt(0)
        s_lshl_b32 s70, s2, 3
        s_add_u32 s70, s70, s3
        s_lshl_b32 s70, s70, 7
        s_add_u32 s70, s70, {STAMPS}
        v_mov_b32 v9, 0
        s_mov_b64 exec, 1
        """)
        for j in range(11):
            a(f"v_mov_b32 v4, s{80+2*j}\nv_mov_b32 v5, s{81+2*j}\nbuffer_store_dwordx2 v[4:5], v9, {srd('ws')}, s70 offen offset:{8*j}\ns_nop 1")
        a("s_mov_b64 exec, -1")
    a("L_end:")
    text,n=hz.process(a.text())
    return wrap(text,grid=256,block=512,lds=LDS_TOTAL,vgpr=256,sgpr=102)

if __name__=="__main__":
    open("k1.s","w").write(build(stamps=False))
    open("k1_st.s","w").write(build(stamps=True))
    open("k1_dbg.s","w").write(build(stamps="dbg"))
    print("ok")
```
